```python
import torch

def _softmax(x, axis=-1):
    return torch.softmax(x, dim=axis)
def _gelu(x):
    return torch.nn.functional.gelu(x, approximate="tanh")
def _silu(x):
    return torch.nn.functional.silu(x)
def _sigmoid(x):
    return torch.sigmoid(x)
def _layernorm(x, axis=-1, eps=1e-5):
    m = x.mean(dim=axis, keepdim=True)
    v = x.var(dim=axis, keepdim=True, unbiased=False)
    return (x - m) / torch.sqrt(v + eps)
def _scatter_add(tgt, idx, src, axis=0):
    return tgt.clone().index_add_(axis, idx, src)
def _segment_sum(src, seg, n):
    out = torch.zeros((n,) + src.shape[1:], dtype=src.dtype)
    return out.index_add_(0, seg, src)
def _pad(x, pw):
    flat = tuple(v for pair in reversed(pw) for v in pair)
    return torch.nn.functional.pad(x, flat)

kernel_name = 'recurrent_scan__mha_block_cached__geglu_ffn__decode'

def setup_inputs():

    _w = (lambda a: (lambda t: t.to(torch.bfloat16) if t.is_floating_point() else t)(torch.as_tensor(a)))
    def _A_setup():
        B, Sq, D = 2, 1, 512
        H, Sk, Dh = 32, 16384, 128
        return {
            "x": _w((lambda *s: torch.randn(*s, dtype=torch.bfloat16) * 0.05)(B, Sq, D)),
            "k_cache": _w((lambda *s: torch.randn(*s, dtype=torch.bfloat16) * 1.6)(B, H, Sk, Dh)),
            "v_cache": _w((lambda *s: torch.randn(*s, dtype=torch.bfloat16) * 0.2)(B, H, Sk, Dh)),
            "wq": _w((lambda *s: torch.randn(*s, dtype=torch.bfloat16) * 1.6)(D, H * Dh) * (D ** -0.5)),
            "wo": _w((lambda *s: torch.randn(*s, dtype=torch.bfloat16) * 0.2)(H * Dh, D) * ((H * Dh) ** -0.5)),
        }
    _A_in = _A_setup()

    def _B_setup():
        B, S, D, F = 2, 1, 512, 1376
        return {
            "x": _w((lambda *s: torch.randn(*s, dtype=torch.bfloat16) * 0.05)(B, S, D)),
            "w_gate": _w((lambda *s: torch.randn(*s, dtype=torch.bfloat16) * 0.1)(D, F)),
            "w_up": _w((lambda *s: torch.randn(*s, dtype=torch.bfloat16) * 0.1)(D, F)),
            "w_down": _w((lambda *s: torch.randn(*s, dtype=torch.bfloat16) * 0.1)(F, D)),
        }
    _B_in = _B_setup()

    return {
        "A_x": _A_in["x"],
        "A_k_cache": _A_in["k_cache"],
        "A_v_cache": _A_in["v_cache"],
        "A_wq": _A_in["wq"],
        "A_wo": _A_in["wo"],
        "B_x": _B_in["x"],
        "B_w_gate": _B_in["w_gate"],
        "B_w_up": _B_in["w_up"],
        "B_w_down": _B_in["w_down"],
    }

def reference(A_x, A_k_cache, A_v_cache, A_wq, A_wo, B_x, B_w_gate, B_w_up, B_w_down):
    def _A_ref(x, k_cache, v_cache, wq, wo):
        B, Sq, D = x.shape
        H, Dh = 32, 128
        q = (lambda x, *d: x.permute(*d))((x @ wq).reshape(B, Sq, H, Dh), 0, 2, 1, 3)
        scores = torch.einsum("bhqd,bhkd->bhqk", q, k_cache) * (Dh ** -0.5)
        p = _softmax(scores, axis=-1)
        o = torch.einsum("bhqk,bhkd->bhqd", p, v_cache)
        return (lambda x, *d: x.permute(*d))(o, 0, 2, 1, 3).reshape(B, Sq, H * Dh) @ wo

    def _B_ref(x, w_gate, w_up, w_down):
        return (_gelu(x @ w_gate) * (x @ w_up)) @ w_down

    x = A_x
    xn = _layernorm(x, axis=-1)
    s = _A_ref(xn, A_k_cache, A_v_cache, A_wq, A_wo)
    g = _silu(_B_ref(xn, B_w_gate, B_w_up, B_w_down))
    return x + s * g
```

```python
import sys, struct

NAME = "recurrent_scan__mha_block_cached__geglu_ffn__decode"
out = []
def e(s=""):
    out.append(s)
def f32(x):
    return "0x%08x" % struct.unpack("<I", struct.pack("<f", x))[0]

LOG2E = f32(1.4426950408889634)
SCALE = f32(128 ** -0.5)

import os
NT = os.environ.get("NT", "nt")
NTS = (" " + NT) if NT else ""

PART_STRIDE = 1024
ACC_OFF = 256 * 1024
WS_SIZE = 0x40000000

def srd(d, p, size):
    e(f"  s_mov_b32 s{d}, s{p}")
    e(f"  s_and_b32 s{d+1}, s{p+1}, 0xffff")
    e(f"  s_mov_b32 s{d+2}, {size}")
    e(f"  s_mov_b32 s{d+3}, 0x00020000")

def row_allreduce(op, v):
    for sh in (8, 4, 2, 1):
        e("  s_nop 1")
        e(f"  {op}_dpp v{v}, v{v}, v{v} row_ror:{sh} row_mask:0xf bank_mask:0xf")

def wave_from_rows(op, v, s0):
    e("  s_nop 1")
    for k in range(4):
        e(f"  v_readlane_b32 s{s0+k}, v{v}, {16*k}")
    e("  s_nop 1")
    e(f"  v_mov_b32 v{v}, s{s0}")
    for k in range(1, 4):
        e(f"  {op} v{v}, s{s0+k}, v{v}")

def bf16r(dst, src):
    e(f"  v_cvt_pk_bf16_f32 v{dst}, v{src}, v{src}")
    e(f"  v_lshlrev_b32 v{dst}, 16, v{dst}")

def layernorm(xr, xf, t, s0):
    for j in range(4):
        e(f"  v_lshlrev_b32 v{xf+2*j}, 16, v{xr+j}")
        e(f"  v_and_b32 v{xf+2*j+1}, 0xffff0000, v{xr+j}")
    e(f"  v_add_f32 v{t}, v{xf}, v{xf+1}")
    for j in range(2, 8):
        e(f"  v_add_f32 v{t}, v{t}, v{xf+j}")
    row_allreduce("v_add_f32", t)
    wave_from_rows("v_add_f32", t, s0)
    e(f"  v_mul_f32 v{t}, {f32(1.0/512)}, v{t}")
    e(f"  v_sub_f32 v{t+2}, v{xf}, v{t}")
    e(f"  v_mul_f32 v{t+1}, v{t+2}, v{t+2}")
    for j in range(1, 8):
        e(f"  v_sub_f32 v{t+2}, v{xf+j}, v{t}")
        e(f"  v_fmac_f32 v{t+1}, v{t+2}, v{t+2}")
    row_allreduce("v_add_f32", t+1)
    wave_from_rows("v_add_f32", t+1, s0)
    e(f"  v_mul_f32 v{t+1}, {f32(1.0/512)}, v{t+1}")
    bf16r(t, t)
    bf16r(t+1, t+1)
    e(f"  v_add_f32 v{t+1}, {f32(1e-5)}, v{t+1}")
    bf16r(t+1, t+1)
    e(f"  v_sqrt_f32 v{t+1}, v{t+1}")
    e("  s_nop 0")
    bf16r(t+1, t+1)
    e(f"  v_rcp_f32 v{t+2}, v{t+1}")
    e("  s_nop 0")
    for j in range(8):
        e(f"  v_sub_f32 v{t+3}, v{xf+j}, v{t}")
        bf16r(t+3, t+3)
        e(f"  v_mul_f32 v{t+4}, v{t+3}, v{t+2}")
        e(f"  v_fma_f32 v{t+5}, -v{t+4}, v{t+1}, v{t+3}")
        e(f"  v_fma_f32 v{t+4}, v{t+5}, v{t+2}, v{t+4}")
        bf16r(xf+j, t+4)

NWG_A = 256
e(f"; @launch kernel=attn_kernel grid=({NWG_A},1,1) block=(1024,1,1) lds=73728")
e("; @launch kernel=proj_kernel grid=(171,1,1) block=(256,1,1) lds=40960")
e("; @launch kernel=final_kernel grid=(1,1,1) block=(1024,1,1) lds=0")
e('.amdgcn_target "amdgcn-amd-amdhsa--gfx950"')
e(".text")

QRED = 0
Q2 = 32768
ML = 36864
XN = 40960
K0, V0, WQ0 = 32, 64, 96
Q, ACC, M, L, S = 4, 8, 16, 17, 18
PLO, PHI, T = 96, 104, 112
VO0, VO1 = 2, 3
NBLK = 8

e(".globl attn_kernel\n.p2align 8\n.type attn_kernel,@function\nattn_kernel:")
e(f"  s_cmp_ge_u32 s2, {NWG_A}")
e("  s_cbranch_scc1 A_end")
e("  s_load_dwordx8 s[4:11], s[0:1], 0")
e("  s_load_dwordx2 s[12:13], s[0:1], 88")
e("  v_and_b32 v1, 63, v0")
e("  v_lshrrev_b32 v26, 6, v0")
e("  s_lshr_b32 s37, s2, 2")
e("  s_lshr_b32 s38, s37, 5")
e("  s_and_b32 s39, s37, 31")
e("  s_lshl_b32 s36, s2, 20")
e("  s_lshl_b32 s40, s38, 10")
e("  s_lshl_b32 s41, s39, 8")
e("  v_lshlrev_b32 v27, 4, v1")
e(f"  v_lshl_add_u32 v{VO0}, v26, 16, v27")
e(f"  v_add_u32 v{VO1}, 4096, v{VO0}")
e("  v_lshrrev_b32 v28, 4, v0")
e("  v_and_b32 v29, 15, v0")
e("  v_lshlrev_b32 v29, 4, v29")
e("  v_lshl_add_u32 v28, v28, 13, v29")
e("  s_waitcnt lgkmcnt(0)")
srd(16, 6, 0x10000000)
srd(20, 8, 0x10000000)
srd(24, 10, 0x400000)
srd(28, 4, 2048)
srd(32, 12, WS_SIZE)

def kv_loads(base, rsrc):
    for i in range(8):
        vo = VO0 if i < 4 else VO1
        e(f"  buffer_load_dwordx4 v[{base+4*i}:{base+4*i+3}], v{vo}, s[{rsrc}:{rsrc+3}], s36 offen offset:{1024*(i%4)}{NTS}")

e("  buffer_load_dwordx4 v[16:19], v27, s[28:31], s40 offen")
for i in range(8):
    e(f"  buffer_load_dwordx4 v[{WQ0+4*i}:{WQ0+4*i+3}], v28, s[24:27], s41 offen")
    if i < 7:
        e("  s_add_u32 s41, s41, 0x80000")
kv_loads(K0, 16)
kv_loads(V0, 20)
e("  s_add_u32 s36, s36, 8192")
e("  s_cmp_lg_u32 s2, 0")
e("  s_cbranch_scc1 A_nozero")
e("  v_cmp_gt_u32 vcc, 512, v0")
e("  s_and_saveexec_b64 s[42:43], vcc")
e("  s_cbranch_execz A_zrest")
e("  v_mov_b32 v20, 0\n  v_mov_b32 v21, 0\n  v_mov_b32 v22, 0\n  v_mov_b32 v23, 0")
e("  v_lshlrev_b32 v24, 4, v0")
e(f"  v_add_u32 v24, {ACC_OFF}, v24")
e("  buffer_store_dwordx4 v[20:23], v24, s[32:35], 0 offen")
e("A_zrest:")
e("  s_mov_b64 exec, s[42:43]")
e("  s_waitcnt vmcnt(0)")
e("A_nozero:")
e("  s_waitcnt vmcnt(24)")
layernorm(16, 8, 20, 44)
e("  v_lshlrev_b32 v29, 11, v26")
e("  v_lshl_add_u32 v30, v1, 5, v29")
e(f"  ds_write_b128 v30, v[8:11] offset:{XN}")
e(f"  ds_write_b128 v30, v[12:15] offset:{XN+16}")
e("  v_lshrrev_b32 v31, 4, v0")
e("  v_lshl_add_u32 v31, v31, 2, v29")
e("  s_waitcnt lgkmcnt(0)")
for i in range(8):
    e(f"  ds_read_b32 v{16+i}, v31 offset:{XN+256*i}")
for j in range(8):
    e(f"  v_mov_b32 v{8+j}, 0")
e("  s_waitcnt vmcnt(16) lgkmcnt(0)")
for i in range(8):
    for j in range(4):
        e(f"  v_lshlrev_b32 v24, 16, v{WQ0+4*i+j}")
        e(f"  v_and_b32 v25, 0xffff0000, v{WQ0+4*i+j}")
        e(f"  v_fmac_f32 v{8+2*j}, v24, v{16+i}")
        e(f"  v_fmac_f32 v{8+2*j+1}, v25, v{16+i}")
e("  v_lshlrev_b32 v30, 5, v0")
e(f"  ds_write_b128 v30, v[8:11] offset:{QRED}")
e(f"  ds_write_b128 v30, v[12:15] offset:{QRED+16}")
e("  v_and_b32 v24, 127, v0")
e("  v_lshrrev_b32 v25, 7, v0")
e("  v_lshlrev_b32 v24, 2, v24")
e("  v_lshl_add_u32 v31, v25, 12, v24")
e("  s_waitcnt lgkmcnt(0)")
e("  s_barrier")
for r in range(8):
    e(f"  ds_read_b32 v{16+r}, v31 offset:{QRED+512*r}")
e("  v_lshlrev_b32 v29, 2, v0")
e("  s_waitcnt lgkmcnt(0)")
for r in range(1, 8):
    e(f"  v_add_f32 v16, v16, v{16+r}")
e(f"  ds_write_b32 v29, v16 offset:{Q2}")
e("  v_and_b32 v24, 15, v1")
e("  v_lshlrev_b32 v24, 5, v24")
e("  s_waitcnt lgkmcnt(0)")
e("  s_barrier")
for jj in range(8):
    e(f"  ds_read_b128 v[{WQ0+8*(jj%4)}:{WQ0+8*(jj%4)+3}], v24 offset:{Q2+512*jj}")
    e(f"  ds_read_b128 v[{WQ0+8*(jj%4)+4}:{WQ0+8*(jj%4)+7}], v24 offset:{Q2+512*jj+16}")
    if jj % 4 == 3:
        e("  s_waitcnt lgkmcnt(0)")
        for k in range(4):
            for j in range(8):
                if jj == 3 and k == 0:
                    e(f"  v_mov_b32 v{8+j}, v{WQ0+j}")
                else:
                    e(f"  v_add_f32 v{8+j}, v{8+j}, v{WQ0+8*k+j}")
for j in range(4):
    e(f"  v_cvt_pk_bf16_f32 v{Q+j}, v{8+2*j}, v{8+2*j+1}")
for j in range(8):
    e(f"  v_mov_b32 v{ACC+j}, 0")
e(f"  v_mov_b32 v{M}, 0xff800000")
e(f"  v_mov_b32 v{L}, 0")
e(f"  s_mov_b32 s44, {SCALE}")
e(f"  s_mov_b32 s45, {LOG2E}")
e("  s_mov_b32 s46, 0")

def block(last):
    e("  s_waitcnt vmcnt(8)")
    for t in range(4):
        for i in range(8):
            c = "0" if t == 0 else f"v{S+i}"
            e(f"  v_dot2_f32_bf16 v{S+i}, v{K0+4*i+t}, v{Q+t}, {c}")
    if not last:
        kv_loads(K0, 16)
    for sh in (8, 4, 2, 1):
        for i in range(8):
            e(f"  v_add_f32_dpp v{S+i}, v{S+i}, v{S+i} row_ror:{sh} row_mask:0xf bank_mask:0xf")
    for rnd in range(2):
        for p in range(4):
            e(f"  v_cvt_pk_bf16_f32 v{T+p}, v{S+2*p}, v{S+2*p+1}")
        for p in range(4):
            e(f"  v_lshlrev_b32 v{S+2*p}, 16, v{T+p}")
            e(f"  v_and_b32 v{S+2*p+1}, 0xffff0000, v{T+p}")
        if rnd == 0:
            for i in range(8):
                e(f"  v_mul_f32 v{S+i}, s44, v{S+i}")
    MN, A = T+4, T+5
    e(f"  v_max3_f32 v{MN}, v{M}, v{S}, v{S+1}")
    for p in range(1, 4):
        e(f"  v_max3_f32 v{MN}, v{MN}, v{S+2*p}, v{S+2*p+1}")
    e(f"  v_sub_f32 v{A}, v{M}, v{MN}")
    for i in range(8):
        e(f"  v_sub_f32 v{S+i}, v{S+i}, v{MN}")
    e(f"  v_mul_f32 v{A}, s45, v{A}")
    for i in range(8):
        e(f"  v_mul_f32 v{S+i}, s45, v{S+i}")
    e(f"  v_exp_f32 v{A}, v{A}")
    for i in range(8):
        e(f"  v_exp_f32 v{S+i}, v{S+i}")
    e(f"  v_mov_b32 v{M}, v{MN}")
    for j in range(8):
        e(f"  v_mul_f32 v{ACC+j}, v{ACC+j}, v{A}")
    for p in range(4):
        e(f"  v_add_f32 v{T+p}, v{S+2*p}, v{S+2*p+1}")
    e(f"  v_add_f32 v{T}, v{T}, v{T+1}")
    e(f"  v_add_f32 v{T+2}, v{T+2}, v{T+3}")
    e(f"  v_add_f32 v{T}, v{T}, v{T+2}")
    e(f"  v_fma_f32 v{L}, v{L}, v{A}, v{T}")
    for i in range(8):
        e(f"  v_cvt_pk_bf16_f32 v{PLO+i}, v{S+i}, 0")
        e(f"  v_cvt_pk_bf16_f32 v{PHI+i}, 0, v{S+i}")
    e("  s_waitcnt vmcnt(0)" if last else "  s_waitcnt vmcnt(8)")
    for i in range(8):
        for t in range(4):
            e(f"  v_dot2_f32_bf16 v{ACC+2*t}, v{V0+4*i+t}, v{PLO+i}, v{ACC+2*t}")
            e(f"  v_dot2_f32_bf16 v{ACC+2*t+1}, v{V0+4*i+t}, v{PHI+i}, v{ACC+2*t+1}")
    if not last:
        kv_loads(V0, 20)
        e("  s_add_u32 s36, s36, 8192")

e("A_loop:")
block(False)
e("  s_add_u32 s46, s46, 1")
e(f"  s_cmp_lt_u32 s46, {NBLK-1}")
e("  s_cbranch_scc1 A_loop")
block(True)
e("  s_nop 3")
e(f"  v_mov_b32 v20, v{M}")
wave_from_rows("v_max_f32", 20, 48)
e(f"  v_sub_f32 v21, v{M}, v20")
e("  v_mul_f32 v21, s45, v21")
e("  v_exp_f32 v21, v21")
e("  s_nop 0")
e(f"  v_mul_f32 v{L}, v{L}, v21")
for j in range(8):
    e(f"  v_mul_f32 v{ACC+j}, v{ACC+j}, v21")
wave_from_rows("v_add_f32", L, 48)
e("  v_lshlrev_b32 v30, 5, v0")
e(f"  ds_write_b128 v30, v[{ACC}:{ACC+3}] offset:{QRED}")
e(f"  ds_write_b128 v30, v[{ACC+4}:{ACC+7}] offset:{QRED+16}")
e("  v_lshlrev_b32 v29, 2, v26")
e(f"  ds_write_b32 v29, v20 offset:{ML}")
e(f"  ds_write_b32 v29, v{L} offset:{ML+64}")
e("  v_mov_b32 v24, 0")
e("  v_lshrrev_b32 v25, 7, v0")
e("  v_lshlrev_b32 v28, 3, v25")
e("  s_waitcnt lgkmcnt(0)")
e("  s_barrier")
for k in range(4):
    e(f"  ds_read_b128 v[{32+4*k}:{35+4*k}], v24 offset:{ML+16*k}")
e(f"  ds_read_b64 v[48:49], v28 offset:{ML}")
for r in range(8):
    e(f"  ds_read_b32 v{50+r}, v31 offset:{QRED+512*r}")
e("  s_waitcnt lgkmcnt(0)")
e("  v_max3_f32 v60, v32, v33, v34")
for k in range(35, 47, 2):
    e(f"  v_max3_f32 v60, v60, v{k}, v{k+1}")
e("  v_max_f32 v60, v60, v47")
e("  v_sub_f32 v48, v48, v60\n  v_sub_f32 v49, v49, v60")
e("  v_mul_f32 v48, s45, v48\n  v_mul_f32 v49, s45, v49")
e("  v_exp_f32 v48, v48\n  v_exp_f32 v49, v49")
e("  v_add_f32 v50, v50, v51\n  v_add_f32 v52, v52, v53\n  v_add_f32 v54, v54, v55\n  v_add_f32 v56, v56, v57")
e("  v_add_f32 v50, v50, v52\n  v_add_f32 v54, v54, v56")
e("  v_mul_f32 v50, v50, v48")
e("  v_fmac_f32 v50, v54, v49")
e("  v_lshlrev_b32 v29, 2, v0")
e(f"  ds_write_b32 v29, v50 offset:{Q2}")
e("  s_waitcnt lgkmcnt(0)")
e("  s_barrier")
e("  v_cmp_gt_u32 vcc, 128, v0")
e("  s_and_saveexec_b64 s[42:43], vcc")
e("  s_cbranch_execz A_end")
for r in range(8):
    e(f"  ds_read_b32 v{50+r}, v29 offset:{Q2+512*r}")
for k in range(4):
    e(f"  ds_read_b128 v[{64+4*k}:{67+4*k}], v24 offset:{ML+64+16*k}")
e("  s_waitcnt lgkmcnt(0)")
for r in range(1, 8):
    e(f"  v_add_f32 v50, v50, v{50+r}")
e("  v_mov_b32 v61, 0")
for k in range(16):
    e(f"  v_sub_f32 v{32+k}, v{32+k}, v60")
    e(f"  v_mul_f32 v{32+k}, s45, v{32+k}")
    e(f"  v_exp_f32 v{32+k}, v{32+k}")
    e("  s_nop 0")
    e(f"  v_fmac_f32 v61, v{32+k}, v{64+k}")
e("  s_lshl_b32 s47, s2, 10")
e("  buffer_store_dword v50, v29, s[32:35], s47 offen")
e("  v_cmp_eq_u32 vcc, 0, v0")
e("  s_and_saveexec_b64 s[42:43], vcc")
e("  s_cbranch_execz A_end")
e("  buffer_store_dwordx2 v[60:61], v24, s[32:35], s47 offen offset:512")
e("A_end:")
e("  s_endpgm")

e(".globl proj_kernel\n.p2align 8\n.type proj_kernel,@function\nproj_kernel:")
e("  s_cmp_ge_u32 s2, 171")
e("  s_cbranch_scc1 B_end")
e("  s_load_dwordx2 s[4:5], s[0:1], 0")
e("  s_load_dwordx2 s[6:7], s[0:1], 32")
e("  s_load_dwordx4 s[8:11], s[0:1], 48")
e("  s_load_dwordx2 s[12:13], s[0:1], 64")
e("  s_load_dwordx2 s[14:15], s[0:1], 88")
e("  v_and_b32 v1, 63, v0")
e("  v_lshrrev_b32 v2, 6, v0")
e(f"  s_mov_b32 s45, {LOG2E}")
e("  s_waitcnt lgkmcnt(0)")
srd(20, 14, WS_SIZE)
e("  s_cmp_ge_u32 s2, 128")
e("  s_cbranch_scc1 B_ffn")
O_OFF, RED = 0, 2048
srd(16, 6, 0x400000)
e("  s_lshr_b32 s36, s2, 3")
e("  s_and_b32 s37, s2, 7")
e("  s_lshl_b32 s38, s36, 18")
e("  s_lshl_b32 s39, s37, 7")
e("  s_add_u32 s38, s38, s39")
e("  s_lshl_b32 s40, s36, 13")
e("  v_lshrrev_b32 v3, 1, v2")
e("  v_and_b32 v4, 1, v2")
e("  v_lshlrev_b32 v5, 17, v3")
e("  v_lshl_add_u32 v5, v4, 12, v5")
e("  v_lshl_add_u32 v6, v1, 3, v5")
for s in range(4):
    e(f"  buffer_load_dwordx2 v[{64+2*s}:{65+2*s}], v6, s[20:23], s40 offen offset:{1024*s}")
    e(f"  buffer_load_dwordx2 v[{72+2*s}:{73+2*s}], v5, s[20:23], s40 offen offset:{1024*s+512}")
e("  v_lshrrev_b32 v7, 3, v0")
e("  v_and_b32 v8, 7, v0")
e("  v_lshlrev_b32 v8, 4, v8")
e("  v_lshl_add_u32 v9, v7, 10, v8")
for i in range(8):
    e(f"  buffer_load_dwordx4 v[{32+4*i}:{35+4*i}], v9, s[16:19], s38 offen")
    if i < 7:
        e("  s_add_u32 s38, s38, 0x8000")
e("  s_waitcnt vmcnt(8)")
e("  v_max3_f32 v10, v72, v74, v76")
e("  v_max_f32 v10, v10, v78")
for s in range(4):
    e(f"  v_sub_f32 v{72+2*s}, v{72+2*s}, v10")
    e(f"  v_mul_f32 v{72+2*s}, s45, v{72+2*s}")
    e(f"  v_exp_f32 v{72+2*s}, v{72+2*s}")
e("  s_nop 0")
e("  v_mul_f32 v11, v72, v73\n  v_mul_f32 v12, v72, v64\n  v_mul_f32 v13, v72, v65")
for s in range(1, 4):
    e(f"  v_fmac_f32 v11, v{72+2*s}, v{73+2*s}")
    e(f"  v_fmac_f32 v12, v{72+2*s}, v{64+2*s}")
    e(f"  v_fmac_f32 v13, v{72+2*s}, v{65+2*s}")
e("  v_rcp_f32 v14, v11")
e("  s_nop 0")
for r in (12, 13):
    e(f"  v_mul_f32 v15, v{r}, v14")
    e(f"  v_fma_f32 v16, -v15, v11, v{r}")
    e("  v_fma_f32 v15, v16, v14, v15")
    bf16r(r, 15)
e("  v_lshlrev_b32 v15, 10, v4")
e("  v_lshl_add_u32 v15, v1, 4, v15")
e("  v_lshl_add_u32 v15, v3, 2, v15")
e(f"  ds_write_b32 v15, v12 offset:{O_OFF}")
e(f"  ds_write_b32 v15, v13 offset:{O_OFF+8}")
e("  v_lshlrev_b32 v16, 3, v7")
for j in range(16):
    e(f"  v_mov_b32 v{96+j}, 0")
e("  s_waitcnt lgkmcnt(0)")
e("  s_barrier")
for i in range(8):
    e(f"  ds_read_b64 v[{64+2*i}:{65+2*i}], v16 offset:{O_OFF+256*i}")
e("  s_waitcnt vmcnt(0) lgkmcnt(0)")
for i in range(8):
    for j in range(4):
        e(f"  v_lshlrev_b32 v18, 16, v{32+4*i+j}")
        e(f"  v_and_b32 v19, 0xffff0000, v{32+4*i+j}")
        e(f"  v_fmac_f32 v{96+2*j}, v18, v{64+2*i}")
        e(f"  v_fmac_f32 v{97+2*j}, v19, v{64+2*i}")
        e(f"  v_fmac_f32 v{104+2*j}, v18, v{65+2*i}")
        e(f"  v_fmac_f32 v{105+2*j}, v19, v{65+2*i}")
e("  s_nop 1")
for j in range(16):
    e(f"  v_add_f32_dpp v{96+j}, v{96+j}, v{96+j} row_ror:8 row_mask:0xf bank_mask:0xf")
e("  v_lshrrev_b32 v17, 4, v0")
e("  v_lshlrev_b32 v17, 9, v17")
e("  v_and_b32 v18, 7, v0")
e("  v_lshl_add_u32 v17, v18, 5, v17")
e(f"  ds_write_b128 v17, v[96:99] offset:{RED}")
e(f"  ds_write_b128 v17, v[100:103] offset:{RED+16}")
e(f"  ds_write_b128 v17, v[104:107] offset:{RED+256}")
e(f"  ds_write_b128 v17, v[108:111] offset:{RED+256+16}")
e("  v_lshlrev_b32 v18, 2, v0")
e("  s_waitcnt lgkmcnt(0)")
e("  s_barrier")
e("  v_cmp_gt_u32 vcc, 128, v0")
e("  s_and_saveexec_b64 s[42:43], vcc")
e("  s_cbranch_execz B_end")
for p in range(16):
    e(f"  ds_read_b32 v{32+p}, v18 offset:{RED+512*p}")
e("  v_lshlrev_b32 v19, 11, v2")
e("  v_lshl_add_u32 v19, v1, 2, v19")
e("  s_lshl_b32 s39, s37, 8")
e(f"  s_add_u32 s39, s39, {ACC_OFF}")
e("  s_waitcnt lgkmcnt(0)")
for p in range(1, 16):
    e(f"  v_add_f32 v32, v32, v{32+p}")
e("  buffer_atomic_add_f32 v32, v19, s[20:23], s39 offen")
e("  s_endpgm")
e("B_ffn:")
XN2, RED3, GU, H_OFF, RED2 = 0, 4096, 12288, 12800, 16384
srd(16, 8, 1409024)
srd(24, 10, 1409024)
srd(28, 12, 1409024)
srd(32, 4, 2048)
e("  s_sub_u32 s36, s2, 128")
e("  s_lshl_b32 s38, s36, 6")
e("  s_lshl_b32 s39, s36, 15")
e("  v_and_b32 v3, 1, v2")
e("  v_lshlrev_b32 v4, 4, v1")
e("  v_lshl_add_u32 v4, v3, 10, v4")
e("  buffer_load_dwordx4 v[16:19], v4, s[32:35], 0 offen")
e("  v_lshrrev_b32 v5, 2, v0")
e("  s_movk_i32 s40, 2752")
e("  v_mul_lo_u32 v6, v5, s40")
e("  v_and_b32 v7, 3, v0")
e("  v_lshl_add_u32 v6, v7, 4, v6")
for i in range(8):
    e(f"  buffer_load_dwordx4 v[{32+4*i}:{35+4*i}], v6, s[16:19], s38 offen")
    e(f"  buffer_load_dwordx4 v[{64+4*i}:{67+4*i}], v6, s[24:27], s38 offen")
    if i < 7:
        e(f"  s_add_u32 s38, s38, {64*2752}")
e("  v_lshlrev_b32 v7, 10, v2")
e("  v_lshl_add_u32 v7, v1, 4, v7")
for i in range(8):
    e(f"  buffer_load_dwordx4 v[{96+4*i}:{99+4*i}], v7, s[28:31], s39 offen")
    if i < 7:
        e("  s_add_u32 s39, s39, 4096")
e("  s_waitcnt vmcnt(24)")
layernorm(16, 8, 20, 46)
e("  v_lshlrev_b32 v26, 6, v1")
e("  v_lshl_add_u32 v26, v3, 2, v26")
for j in range(8):
    e(f"  ds_write_b32 v26, v{8+j} offset:{XN2+8*j}")
e("  v_lshlrev_b32 v27, 3, v5")
for j in range(32):
    e(f"  v_mov_b32 v{128+j}, 0")
e("  s_waitcnt lgkmcnt(0)")
e("  s_barrier")
for i in range(8):
    e(f"  ds_read_b64 v[{8+2*i}:{9+2*i}], v27 offset:{XN2+512*i}")
e("  s_waitcnt vmcnt(8) lgkmcnt(0)")
for i in range(8):
    for (wb, ab) in ((32, 128), (64, 144)):
        for j in range(4):
            e(f"  v_lshlrev_b32 v28, 16, v{wb+4*i+j}")
            e(f"  v_and_b32 v29, 0xffff0000, v{wb+4*i+j}")
            e(f"  v_fmac_f32 v{ab+2*j}, v28, v{8+2*i}")
            e(f"  v_fmac_f32 v{ab+2*j+1}, v29, v{8+2*i}")
            e(f"  v_fmac_f32 v{ab+8+2*j}, v28, v{9+2*i}")
            e(f"  v_fmac_f32 v{ab+8+2*j+1}, v29, v{9+2*i}")
for sh in (4, 8):
    e("  s_nop 1")
    for j in range(32):
        e(f"  v_add_f32_dpp v{128+j}, v{128+j}, v{128+j} row_ror:{sh} row_mask:0xf bank_mask:0xf")
e("  v_lshrrev_b32 v28, 4, v0")
e("  v_lshlrev_b32 v28, 9, v28")
e("  v_and_b32 v29, 3, v0")
e("  v_lshl_add_u32 v28, v29, 5, v28")
for a in range(4):
    e(f"  ds_write_b128 v28, v[{128+8*a}:{131+8*a}] offset:{RED3+128*a}")
    e(f"  ds_write_b128 v28, v[{132+8*a}:{135+8*a}] offset:{RED3+128*a+16}")
e("  v_lshlrev_b32 v30, 2, v0")
e("  s_waitcnt lgkmcnt(0)")
e("  s_barrier")
e("  v_cmp_gt_u32 vcc, 128, v0")
e("  s_and_saveexec_b64 s[42:43], vcc")
e("  s_cbranch_execz B_f1")
for p in range(16):
    e(f"  ds_read_b32 v{32+p}, v30 offset:{RED3+512*p}")
e("  s_waitcnt lgkmcnt(0)")
for p in range(1, 16):
    e(f"  v_add_f32 v32, v32, v{32+p}")
bf16r(32, 32)
e(f"  ds_write_b32 v30, v32 offset:{GU}")
e("  s_waitcnt lgkmcnt(0)")
e("B_f1:")
e("  s_mov_b64 exec, s[42:43]")
e("  s_barrier")
e("  v_cmp_gt_u32 vcc, 64, v0")
e("  s_and_saveexec_b64 s[42:43], vcc")
e("  s_cbranch_execz B_f2")
e(f"  ds_read_b32 v32, v30 offset:{GU}")
e(f"  ds_read_b32 v33, v30 offset:{GU+256}")
e("  s_waitcnt lgkmcnt(0)")
e("  v_mul_f32 v34, v32, v32")
e("  v_mul_f32 v34, v34, v32")
e(f"  v_mul_f32 v34, {f32(0.044715)}, v34")
e("  v_add_f32 v34, v34, v32")
e(f"  v_mul_f32 v34, {f32(2*0.7978845608028654*1.4426950408889634)}, v34")
e("  v_exp_f32 v34, v34")
e("  s_nop 0")
e("  v_add_f32 v34, 1.0, v34")
e("  v_rcp_f32 v34, v34")
e("  s_nop 0")
e("  v_sub_f32 v34, 1.0, v34")
e("  v_mul_f32 v34, v34, v32")
bf16r(34, 34)
e("  v_mul_f32 v34, v34, v33")
bf16r(34, 34)
e("  v_and_b32 v35, 31, v0")
e("  v_lshrrev_b32 v36, 5, v0")
e("  v_lshlrev_b32 v35, 3, v35")
e("  v_lshl_add_u32 v35, v36, 2, v35")
e(f"  ds_write_b32 v35, v34 offset:{H_OFF}")
e("  s_waitcnt lgkmcnt(0)")
e("B_f2:")
e("  s_mov_b64 exec, s[42:43]")
e("  v_lshlrev_b32 v27, 3, v2")
for j in range(16):
    e(f"  v_mov_b32 v{128+j}, 0")
e("  s_barrier")
for i in range(8):
    e(f"  ds_read_b64 v[{8+2*i}:{9+2*i}], v27 offset:{H_OFF+32*i}")
e("  s_waitcnt vmcnt(0) lgkmcnt(0)")
for i in range(8):
    for j in range(4):
        e(f"  v_lshlrev_b32 v28, 16, v{96+4*i+j}")
        e(f"  v_and_b32 v29, 0xffff0000, v{96+4*i+j}")
        e(f"  v_fmac_f32 v{128+2*j}, v28, v{8+2*i}")
        e(f"  v_fmac_f32 v{129+2*j}, v29, v{8+2*i}")
        e(f"  v_fmac_f32 v{136+2*j}, v28, v{9+2*i}")
        e(f"  v_fmac_f32 v{137+2*j}, v29, v{9+2*i}")
e("  v_lshlrev_b32 v28, 12, v2")
e("  v_lshl_add_u32 v28, v1, 5, v28")
e(f"  ds_write_b128 v28, v[128:131] offset:{RED2}")
e(f"  ds_write_b128 v28, v[132:135] offset:{RED2+16}")
e(f"  ds_write_b128 v28, v[136:139] offset:{RED2+2048}")
e(f"  ds_write_b128 v28, v[140:143] offset:{RED2+2048+16}")
e("  s_waitcnt lgkmcnt(0)")
e("  s_barrier")
for k in range(4):
    for w in range(4):
        e(f"  ds_read_b32 v{32+4*k+w}, v30 offset:{RED2+4096*w+1024*k}")
e(f"  s_mov_b32 s39, {ACC_OFF+4096}")
e("  s_waitcnt lgkmcnt(0)")
for k in range(4):
    e(f"  v_add_f32 v{32+4*k}, v{32+4*k}, v{33+4*k}")
    e(f"  v_add_f32 v{34+4*k}, v{34+4*k}, v{35+4*k}")
    e(f"  v_add_f32 v{32+4*k}, v{32+4*k}, v{34+4*k}")
    e(f"  buffer_atomic_add_f32 v{32+4*k}, v30, s[20:23], s39 offen offset:{1024*k}")
e("B_end:")
e("  s_endpgm")

e(".globl final_kernel\n.p2align 8\n.type final_kernel,@function\nfinal_kernel:")
e("  s_cmp_ge_u32 s2, 1")
e("  s_cbranch_scc1 C_end")
e("  s_load_dwordx2 s[4:5], s[0:1], 0")
e("  s_load_dwordx2 s[6:7], s[0:1], 72")
e("  s_load_dwordx2 s[8:9], s[0:1], 88")
e("  v_lshlrev_b32 v1, 2, v0")
e("  v_lshlrev_b32 v2, 1, v0")
e(f"  s_mov_b32 s24, {ACC_OFF}")
e("  s_waitcnt lgkmcnt(0)")
srd(12, 4, 2048)
srd(16, 6, 2048)
srd(20, 8, WS_SIZE)
e("  buffer_load_dword v3, v1, s[20:23], s24 offen")
e("  s_add_u32 s24, s24, 4096")
e("  buffer_load_dword v4, v1, s[20:23], s24 offen")
e("  buffer_load_ushort v5, v2, s[12:15], 0 offen")
e("  s_waitcnt vmcnt(0)")
bf16r(3, 3)
bf16r(4, 4)
e(f"  v_mul_f32 v6, {f32(-1.4426950408889634)}, v4")
e("  v_exp_f32 v6, v6")
e("  s_nop 0")
e("  v_add_f32 v6, 1.0, v6")
e("  v_rcp_f32 v7, v6")
e("  s_nop 0")
e("  v_mul_f32 v7, v7, v4")
bf16r(7, 7)
e("  v_mul_f32 v7, v7, v3")
bf16r(7, 7)
e("  v_lshlrev_b32 v5, 16, v5")
e("  v_add_f32 v7, v7, v5")
e("  v_cvt_pk_bf16_f32 v7, v7, v7")
e("  buffer_store_short v7, v2, s[16:19], 0 offen")
e("C_end:")
e("  s_endpgm")

e('.section .rodata,"a"')
for (k, nv, ns) in (("attn_kernel", 128, 64), ("proj_kernel", 168, 64), ("final_kernel", 16, 32)):
    e(".p2align 6")
    e(f".amdhsa_kernel {k}")
    e(f"  .amdhsa_next_free_vgpr {nv}")
    e(f"  .amdhsa_next_free_sgpr {ns}")
    e(f"  .amdhsa_accum_offset {nv}")
    e("  .amdhsa_group_segment_fixed_size 0")
    e("  .amdhsa_kernarg_size 96")
    e("  .amdhsa_user_sgpr_count 2")
    e("  .amdhsa_user_sgpr_kernarg_segment_ptr 1")
    e("  .amdhsa_system_sgpr_workgroup_id_x 1")
    e(".end_amdhsa_kernel")

dst = sys.argv[1] if len(sys.argv) > 1 else f"cdna_kernels/{NAME}.s"
open(dst, "w").write("\n".join(out) + "\n")
```

```python
import sys, struct

NAME = "recurrent_scan__mha_block_cached__geglu_ffn__decode"
out = []
def e(s=""):
    out.append(s)
def f32(x):
    return "0x%08x" % struct.unpack("<I", struct.pack("<f", x))[0]

LOG2E = f32(1.4426950408889634)
SCALE = f32(128 ** -0.5)

import os
NT = os.environ.get("NT", "nt")
NTS = (" " + NT) if NT else ""

PART_STRIDE = 1024
ACC_OFF = 256 * 1024
WS_SIZE = 0x40000000
H_WS = ACC_OFF + 8192

def srd(d, p, size):
    e(f"  s_mov_b32 s{d}, s{p}")
    e(f"  s_and_b32 s{d+1}, s{p+1}, 0xffff")
    e(f"  s_mov_b32 s{d+2}, {size}")
    e(f"  s_mov_b32 s{d+3}, 0x00020000")

def row_allreduce(op, v):
    for sh in (8, 4, 2, 1):
        e("  s_nop 1")
        e(f"  {op}_dpp v{v}, v{v}, v{v} row_ror:{sh} row_mask:0xf bank_mask:0xf")

def wave_from_rows(op, v, s0):
    e("  s_nop 1")
    for k in range(4):
        e(f"  v_readlane_b32 s{s0+k}, v{v}, {16*k}")
    e("  s_nop 1")
    e(f"  v_mov_b32 v{v}, s{s0}")
    for k in range(1, 4):
        e(f"  {op} v{v}, s{s0+k}, v{v}")

def bf16r(dst, src):
    e(f"  v_cvt_pk_bf16_f32 v{dst}, v{src}, v{src}")
    e(f"  v_lshlrev_b32 v{dst}, 16, v{dst}")

def layernorm(xr, xf, t, s0):
    for j in range(4):
        e(f"  v_lshlrev_b32 v{xf+2*j}, 16, v{xr+j}")
        e(f"  v_and_b32 v{xf+2*j+1}, 0xffff0000, v{xr+j}")
    e(f"  v_add_f32 v{t}, v{xf}, v{xf+1}")
    for j in range(2, 8):
        e(f"  v_add_f32 v{t}, v{t}, v{xf+j}")
    row_allreduce("v_add_f32", t)
    wave_from_rows("v_add_f32", t, s0)
    e(f"  v_mul_f32 v{t}, {f32(1.0/512)}, v{t}")
    e(f"  v_sub_f32 v{t+2}, v{xf}, v{t}")
    e(f"  v_mul_f32 v{t+1}, v{t+2}, v{t+2}")
    for j in range(1, 8):
        e(f"  v_sub_f32 v{t+2}, v{xf+j}, v{t}")
        e(f"  v_fmac_f32 v{t+1}, v{t+2}, v{t+2}")
    row_allreduce("v_add_f32", t+1)
    wave_from_rows("v_add_f32", t+1, s0)
    e(f"  v_mul_f32 v{t+1}, {f32(1.0/512)}, v{t+1}")
    bf16r(t, t)
    bf16r(t+1, t+1)
    e(f"  v_add_f32 v{t+1}, {f32(1e-5)}, v{t+1}")
    bf16r(t+1, t+1)
    e(f"  v_sqrt_f32 v{t+1}, v{t+1}")
    e("  s_nop 0")
    bf16r(t+1, t+1)
    e(f"  v_rcp_f32 v{t+2}, v{t+1}")
    e("  s_nop 0")
    for j in range(8):
        e(f"  v_sub_f32 v{t+3}, v{xf+j}, v{t}")
        bf16r(t+3, t+3)
        e(f"  v_mul_f32 v{t+4}, v{t+3}, v{t+2}")
        e(f"  v_fma_f32 v{t+5}, -v{t+4}, v{t+1}, v{t+3}")
        e(f"  v_fma_f32 v{t+4}, v{t+5}, v{t+2}, v{t+4}")
        bf16r(xf+j, t+4)

def gelu_mul(g, u, d):
    e(f"  v_mul_f32 v{d}, v{g}, v{g}")
    e(f"  v_mul_f32 v{d}, v{d}, v{g}")
    e(f"  v_mul_f32 v{d}, {f32(0.044715)}, v{d}")
    e(f"  v_add_f32 v{d}, v{d}, v{g}")
    e(f"  v_mul_f32 v{d}, {f32(2*0.7978845608028654*1.4426950408889634)}, v{d}")
    e(f"  v_exp_f32 v{d}, v{d}")
    e("  s_nop 0")
    e(f"  v_add_f32 v{d}, 1.0, v{d}")
    e(f"  v_rcp_f32 v{d}, v{d}")
    e("  s_nop 0")
    e(f"  v_sub_f32 v{d}, 1.0, v{d}")
    e(f"  v_mul_f32 v{d}, v{d}, v{g}")
    bf16r(d, d)
    e(f"  v_mul_f32 v{d}, v{d}, v{u}")
    bf16r(d, d)

NWG_A = 256
e(f"; @launch kernel=attn_kernel grid=({NWG_A},1,1) block=(1024,1,1) lds=77824")
e("; @launch kernel=proj_kernel grid=(171,1,1) block=(256,1,1) lds=40960")
e('.amdgcn_target "amdgcn-amd-amdhsa--gfx950"')
e(".text")

QRED = 0
Q2 = 32768
ML = 36864
GU2 = 37120
FRED = 37888
XN = 43008

K0, V0, WQ0 = 32, 64, 96
Q, ACC, M, L, S = 4, 8, 16, 17, 18
PLO, PHI, T = 96, 104, 112
VO0, VO1 = 2, 3
NBLK = 8

e(".globl attn_kernel\n.p2align 8\n.type attn_kernel,@function\nattn_kernel:")
e(f"  s_cmp_ge_u32 s2, {NWG_A}")
e("  s_cbranch_scc1 A_end")
e("  s_load_dwordx8 s[4:11], s[0:1], 0")
e("  s_load_dwordx2 s[12:13], s[0:1], 88")
e("  s_load_dwordx4 s[52:55], s[0:1], 48")
e("  v_and_b32 v1, 63, v0")
e("  v_lshrrev_b32 v26, 6, v0")
e("  s_lshr_b32 s37, s2, 2")
e("  s_lshr_b32 s38, s37, 5")
e("  s_and_b32 s39, s37, 31")
e("  s_lshl_b32 s36, s2, 20")
e("  s_lshl_b32 s40, s38, 10")
e("  s_lshl_b32 s41, s39, 8")
e("  v_lshlrev_b32 v27, 4, v1")
e(f"  v_lshl_add_u32 v{VO0}, v26, 16, v27")
e(f"  v_add_u32 v{VO1}, 4096, v{VO0}")
e("  v_lshrrev_b32 v28, 4, v0")
e("  v_and_b32 v29, 15, v0")
e("  v_lshlrev_b32 v29, 4, v29")
e("  v_lshl_add_u32 v28, v28, 13, v29")
e("  s_waitcnt lgkmcnt(0)")
srd(16, 6, 0x10000000)
srd(20, 8, 0x10000000)
srd(24, 10, 0x400000)
srd(28, 4, 2048)
srd(32, 12, WS_SIZE)
e("  s_and_b32 s50, s2, 127")
e("  s_cmp_lt_u32 s50, 86")
e("  s_cselect_b32 s51, 1409024, 0")
e("  s_mov_b32 s56, s52\n  s_and_b32 s57, s53, 0xffff\n  s_mov_b32 s58, s51\n  s_mov_b32 s59, 0x00020000")
e("  s_mov_b32 s60, s54\n  s_and_b32 s61, s55, 0xffff\n  s_mov_b32 s62, s51\n  s_mov_b32 s63, 0x00020000")
e("  s_lshl_b32 s49, s50, 5")
e("  v_and_b32 v29, 511, v0")
e("  s_movk_i32 s48, 2752")
e("  v_mul_lo_u32 v29, v29, s48")
e("  v_readfirstlane_b32 s64, v26")

def kv_loads(base, rsrc, lo=0, hi=8):
    for i in range(lo, hi):
        vo = VO0 if i < 4 else VO1
        e(f"  buffer_load_dwordx4 v[{base+4*i}:{base+4*i+3}], v{vo}, s[{rsrc}:{rsrc+3}], s36 offen offset:{1024*(i%4)}{NTS}")

e("  buffer_load_dwordx4 v[16:19], v27, s[28:31], s40 offen")
for i in range(8):
    e(f"  buffer_load_dwordx4 v[{WQ0+4*i}:{WQ0+4*i+3}], v28, s[24:27], s41 offen")
    if i < 7:
        e("  s_add_u32 s41, s41, 0x80000")
e("  s_cmp_ge_u32 s64, 8")
e("  s_cbranch_scc1 A_ldu")
e("  buffer_load_dwordx4 v[88:91], v29, s[56:59], s49 offen")
e("  buffer_load_dwordx4 v[92:95], v29, s[56:59], s49 offen offset:16")
e("  s_branch A_ldd")
e("A_ldu:")
e("  buffer_load_dwordx4 v[88:91], v29, s[60:63], s49 offen")
e("  buffer_load_dwordx4 v[92:95], v29, s[60:63], s49 offen offset:16")
e("A_ldd:")
kv_loads(K0, 16)
kv_loads(V0, 20, 0, 6)
e("  s_cmp_lg_u32 s2, 0")
e("  s_cbranch_scc1 A_nozero")
e("  v_cmp_gt_u32 vcc, 512, v0")
e("  s_and_saveexec_b64 s[42:43], vcc")
e("  s_cbranch_execz A_zrest")
e("  v_mov_b32 v20, 0\n  v_mov_b32 v21, 0\n  v_mov_b32 v22, 0\n  v_mov_b32 v23, 0")
e("  v_lshlrev_b32 v24, 4, v0")
e(f"  v_add_u32 v24, {ACC_OFF}, v24")
e("  buffer_store_dwordx4 v[20:23], v24, s[32:35], 0 offen")
e("A_zrest:")
e("  s_mov_b64 exec, s[42:43]")
e("  s_nop 1")
e("A_nozero:")
e("  s_waitcnt vmcnt(24)")
layernorm(16, 8, 20, 44)
e("  v_lshlrev_b32 v29, 11, v26")
e("  v_lshl_add_u32 v30, v1, 5, v29")
e(f"  ds_write_b128 v30, v[8:11] offset:{XN}")
e(f"  ds_write_b128 v30, v[12:15] offset:{XN+16}")
e("  v_lshrrev_b32 v31, 4, v0")
e("  v_lshl_add_u32 v31, v31, 2, v29")
e("  s_waitcnt lgkmcnt(0)")
for i in range(8):
    e(f"  ds_read_b32 v{16+i}, v31 offset:{XN+256*i}")
e("  v_and_b32 v30, 511, v0")
e("  v_lshl_add_u32 v30, v30, 2, v29")
e(f"  ds_read_b32 v27, v30 offset:{XN}")
for j in range(8):
    e(f"  v_mov_b32 v{8+j}, 0")
e("  s_waitcnt vmcnt(16) lgkmcnt(0)")
for i in range(8):
    for j in range(4):
        e(f"  v_lshlrev_b32 v24, 16, v{WQ0+4*i+j}")
        e(f"  v_and_b32 v25, 0xffff0000, v{WQ0+4*i+j}")
        e(f"  v_fmac_f32 v{8+2*j}, v24, v{16+i}")
        e(f"  v_fmac_f32 v{8+2*j+1}, v25, v{16+i}")
e("  v_lshlrev_b32 v30, 5, v0")
e(f"  ds_write_b128 v30, v[8:11] offset:{QRED}")
e(f"  ds_write_b128 v30, v[12:15] offset:{QRED+16}")
e("  s_waitcnt vmcnt(14)")
for j in range(8):
    e(f"  v_lshlrev_b32 v{96+2*j}, 16, v{88+j}")
    e(f"  v_and_b32 v{97+2*j}, 0xffff0000, v{88+j}")
for j in range(16):
    e(f"  v_mul_f32 v{96+j}, v{96+j}, v27")
kv_loads(V0, 20, 6, 8)
e("  s_add_u32 s36, s36, 8192")
for sh in (8, 4, 2, 1):
    for j in range(16):
        e(f"  v_add_f32_dpp v{96+j}, v{96+j}, v{96+j} row_ror:{sh} row_mask:0xf bank_mask:0xf")
e("  v_lshrrev_b32 v24, 4, v0")
e("  v_lshlrev_b32 v24, 6, v24")
for k in range(4):
    e(f"  ds_write_b128 v24, v[{96+4*k}:{99+4*k}] offset:{FRED+16*k}")
e("  v_and_b32 v24, 127, v0")
e("  v_lshrrev_b32 v25, 7, v0")
e("  v_lshlrev_b32 v24, 2, v24")
e("  v_lshl_add_u32 v31, v25, 12, v24")
e("  s_waitcnt lgkmcnt(0)")
e("  s_barrier")
for r in range(8):
    e(f"  ds_read_b32 v{16+r}, v31 offset:{QRED+512*r}")
e("  v_lshlrev_b32 v29, 2, v0")
e("  s_waitcnt lgkmcnt(0)")
for r in range(1, 8):
    e(f"  v_add_f32 v16, v16, v{16+r}")
e(f"  ds_write_b32 v29, v16 offset:{Q2}")
e("  s_cmp_lg_u32 s64, 0")
e("  s_cbranch_scc1 A_nf1")
e("  v_lshrrev_b32 v24, 4, v1")
e("  v_and_b32 v25, 15, v1")
e("  v_lshlrev_b32 v24, 11, v24")
e("  v_lshl_add_u32 v24, v25, 2, v24")
e("  v_and_b32 v24, 0xfff, v24")
for p in range(32):
    e(f"  ds_read_b32 v{96+p}, v24 offset:{FRED+64*p}")
e("  s_waitcnt lgkmcnt(0)")
for p in range(1, 32):
    e(f"  v_add_f32 v96, v96, v{96+p}")
bf16r(96, 96)
e(f"  ds_write_b32 v29, v96 offset:{GU2}")
e("A_nf1:")
e("  v_and_b32 v24, 15, v1")
e("  v_lshlrev_b32 v24, 5, v24")
e("  s_waitcnt lgkmcnt(0)")
e("  s_barrier")
e("  s_cmp_lg_u32 s64, 0")
e("  s_cbranch_scc1 A_nf2")
e("  s_cmp_ge_u32 s50, 86")
e("  s_cbranch_scc1 A_nf2")
e("  v_cmp_gt_u32 vcc, 16, v1")
e("  s_and_saveexec_b64 s[42:43], vcc")
e(f"  ds_read_b32 v16, v29 offset:{GU2}")
e(f"  ds_read_b32 v17, v29 offset:{GU2+64}")
e("  s_waitcnt lgkmcnt(0)")
gelu_mul(16, 17, 18)
e("  s_mul_i32 s48, s38, 5504")
e("  s_lshl_b32 s49, s50, 6")
e("  s_add_u32 s48, s48, s49")
e(f"  s_add_u32 s48, s48, {H_WS}")
e("  buffer_store_dword v18, v29, s[32:35], s48 offen")
e("  s_mov_b64 exec, s[42:43]")
e("A_nf2:")
for jj in range(8):
    e(f"  ds_read_b128 v[{WQ0+8*(jj%4)}:{WQ0+8*(jj%4)+3}], v24 offset:{Q2+512*jj}")
    e(f"  ds_read_b128 v[{WQ0+8*(jj%4)+4}:{WQ0+8*(jj%4)+7}], v24 offset:{Q2+512*jj+16}")
    if jj % 4 == 3:
        e("  s_waitcnt lgkmcnt(0)")
        for k in range(4):
            for j in range(8):
                if jj == 3 and k == 0:
                    e(f"  v_mov_b32 v{8+j}, v{WQ0+j}")
                else:
                    e(f"  v_add_f32 v{8+j}, v{8+j}, v{WQ0+8*k+j}")
for j in range(4):
    e(f"  v_cvt_pk_bf16_f32 v{Q+j}, v{8+2*j}, v{8+2*j+1}")
for j in range(8):
    e(f"  v_mov_b32 v{ACC+j}, 0")
e(f"  v_mov_b32 v{M}, 0xff800000")
e(f"  v_mov_b32 v{L}, 0")
e(f"  s_mov_b32 s44, {SCALE}")
e(f"  s_mov_b32 s45, {LOG2E}")
e("  s_mov_b32 s46, 0")

def block(last):
    e("  s_waitcnt vmcnt(8)")
    for t in range(4):
        for i in range(8):
            c = "0" if t == 0 else f"v{S+i}"
            e(f"  v_dot2_f32_bf16 v{S+i}, v{K0+4*i+t}, v{Q+t}, {c}")
    if not last:
        kv_loads(K0, 16)
    for sh in (8, 4, 2, 1):
        for i in range(8):
            e(f"  v_add_f32_dpp v{S+i}, v{S+i}, v{S+i} row_ror:{sh} row_mask:0xf bank_mask:0xf")
    for rnd in range(2):
        for p in range(4):
            e(f"  v_cvt_pk_bf16_f32 v{T+p}, v{S+2*p}, v{S+2*p+1}")
        for p in range(4):
            e(f"  v_lshlrev_b32 v{S+2*p}, 16, v{T+p}")
            e(f"  v_and_b32 v{S+2*p+1}, 0xffff0000, v{T+p}")
        if rnd == 0:
            for i in range(8):
                e(f"  v_mul_f32 v{S+i}, s44, v{S+i}")
    MN, A = T+4, T+5
    e(f"  v_max3_f32 v{MN}, v{M}, v{S}, v{S+1}")
    for p in range(1, 4):
        e(f"  v_max3_f32 v{MN}, v{MN}, v{S+2*p}, v{S+2*p+1}")
    e(f"  v_sub_f32 v{A}, v{M}, v{MN}")
    for i in range(8):
        e(f"  v_sub_f32 v{S+i}, v{S+i}, v{MN}")
    e(f"  v_mul_f32 v{A}, s45, v{A}")
    for i in range(8):
        e(f"  v_mul_f32 v{S+i}, s45, v{S+i}")
    e(f"  v_exp_f32 v{A}, v{A}")
    for i in range(8):
        e(f"  v_exp_f32 v{S+i}, v{S+i}")
    e(f"  v_mov_b32 v{M}, v{MN}")
    for j in range(8):
        e(f"  v_mul_f32 v{ACC+j}, v{ACC+j}, v{A}")
    for p in range(4):
        e(f"  v_add_f32 v{T+p}, v{S+2*p}, v{S+2*p+1}")
    e(f"  v_add_f32 v{T}, v{T}, v{T+1}")
    e(f"  v_add_f32 v{T+2}, v{T+2}, v{T+3}")
    e(f"  v_add_f32 v{T}, v{T}, v{T+2}")
    e(f"  v_fma_f32 v{L}, v{L}, v{A}, v{T}")
    for i in range(8):
        e(f"  v_cvt_pk_bf16_f32 v{PLO+i}, v{S+i}, 0")
        e(f"  v_cvt_pk_bf16_f32 v{PHI+i}, 0, v{S+i}")
    e("  s_waitcnt vmcnt(0)" if last else "  s_waitcnt vmcnt(8)")
    for i in range(8):
        for t in range(4):
            e(f"  v_dot2_f32_bf16 v{ACC+2*t}, v{V0+4*i+t}, v{PLO+i}, v{ACC+2*t}")
            e(f"  v_dot2_f32_bf16 v{ACC+2*t+1}, v{V0+4*i+t}, v{PHI+i}, v{ACC+2*t+1}")
    if not last:
        kv_loads(V0, 20)
        e("  s_add_u32 s36, s36, 8192")

e("A_loop:")
block(False)
e("  s_add_u32 s46, s46, 1")
e(f"  s_cmp_lt_u32 s46, {NBLK-1}")
e("  s_cbranch_scc1 A_loop")
block(True)
e("  s_nop 3")
e(f"  v_mov_b32 v20, v{M}")
wave_from_rows("v_max_f32", 20, 48)
e(f"  v_sub_f32 v21, v{M}, v20")
e("  v_mul_f32 v21, s45, v21")
e("  v_exp_f32 v21, v21")
e("  s_nop 0")
e(f"  v_mul_f32 v{L}, v{L}, v21")
for j in range(8):
    e(f"  v_mul_f32 v{ACC+j}, v{ACC+j}, v21")
wave_from_rows("v_add_f32", L, 48)
e("  v_lshlrev_b32 v30, 5, v0")
e(f"  ds_write_b128 v30, v[{ACC}:{ACC+3}] offset:{QRED}")
e(f"  ds_write_b128 v30, v[{ACC+4}:{ACC+7}] offset:{QRED+16}")
e("  v_lshlrev_b32 v29, 2, v26")
e(f"  ds_write_b32 v29, v20 offset:{ML}")
e(f"  ds_write_b32 v29, v{L} offset:{ML+64}")
e("  v_mov_b32 v24, 0")
e("  v_lshrrev_b32 v25, 7, v0")
e("  v_lshlrev_b32 v28, 3, v25")
e("  s_waitcnt lgkmcnt(0)")
e("  s_barrier")
for k in range(4):
    e(f"  ds_read_b128 v[{32+4*k}:{35+4*k}], v24 offset:{ML+16*k}")
e(f"  ds_read_b64 v[48:49], v28 offset:{ML}")
for r in range(8):
    e(f"  ds_read_b32 v{50+r}, v31 offset:{QRED+512*r}")
e("  s_waitcnt lgkmcnt(0)")
e("  v_max3_f32 v60, v32, v33, v34")
for k in range(35, 47, 2):
    e(f"  v_max3_f32 v60, v60, v{k}, v{k+1}")
e("  v_max_f32 v60, v60, v47")
e("  v_sub_f32 v48, v48, v60\n  v_sub_f32 v49, v49, v60")
e("  v_mul_f32 v48, s45, v48\n  v_mul_f32 v49, s45, v49")
e("  v_exp_f32 v48, v48\n  v_exp_f32 v49, v49")
e("  v_add_f32 v50, v50, v51\n  v_add_f32 v52, v52, v53\n  v_add_f32 v54, v54, v55\n  v_add_f32 v56, v56, v57")
e("  v_add_f32 v50, v50, v52\n  v_add_f32 v54, v54, v56")
e("  v_mul_f32 v50, v50, v48")
e("  v_fmac_f32 v50, v54, v49")
e("  v_lshlrev_b32 v29, 2, v0")
e(f"  ds_write_b32 v29, v50 offset:{Q2}")
e("  s_waitcnt lgkmcnt(0)")
e("  s_barrier")
e("  v_cmp_gt_u32 vcc, 128, v0")
e("  s_and_saveexec_b64 s[42:43], vcc")
e("  s_cbranch_execz A_end")
for r in range(8):
    e(f"  ds_read_b32 v{50+r}, v29 offset:{Q2+512*r}")
for k in range(4):
    e(f"  ds_read_b128 v[{64+4*k}:{67+4*k}], v24 offset:{ML+64+16*k}")
e("  s_waitcnt lgkmcnt(0)")
for r in range(1, 8):
    e(f"  v_add_f32 v50, v50, v{50+r}")
e("  v_mov_b32 v61, 0")
for k in range(16):
    e(f"  v_sub_f32 v{32+k}, v{32+k}, v60")
    e(f"  v_mul_f32 v{32+k}, s45, v{32+k}")
    e(f"  v_exp_f32 v{32+k}, v{32+k}")
    e("  s_nop 0")
    e(f"  v_fmac_f32 v61, v{32+k}, v{64+k}")
e("  s_lshl_b32 s47, s2, 10")
e("  buffer_store_dword v50, v29, s[32:35], s47 offen")
e("  v_cmp_eq_u32 vcc, 0, v0")
e("  s_and_saveexec_b64 s[42:43], vcc")
e("  s_cbranch_execz A_end")
e("  buffer_store_dwordx2 v[60:61], v24, s[32:35], s47 offen offset:512")
e("A_end:")
e("  s_endpgm")

e(".globl proj_kernel\n.p2align 8\n.type proj_kernel,@function\nproj_kernel:")
e("  s_cmp_ge_u32 s2, 171")
e("  s_cbranch_scc1 B_end")
e("  s_load_dwordx2 s[4:5], s[0:1], 0")
e("  s_load_dwordx2 s[6:7], s[0:1], 32")
e("  s_load_dwordx4 s[8:11], s[0:1], 48")
e("  s_load_dwordx2 s[12:13], s[0:1], 64")
e("  s_load_dwordx2 s[14:15], s[0:1], 88")
e("  v_and_b32 v1, 63, v0")
e("  v_lshrrev_b32 v2, 6, v0")
e(f"  s_mov_b32 s45, {LOG2E}")
e("  s_waitcnt lgkmcnt(0)")
srd(20, 14, WS_SIZE)
e("  s_cmp_ge_u32 s2, 128")
e("  s_cbranch_scc1 B_ffn")
O_OFF, RED = 0, 2048
srd(16, 6, 0x400000)
e("  s_lshr_b32 s36, s2, 3")
e("  s_and_b32 s37, s2, 7")
e("  s_lshl_b32 s38, s36, 18")
e("  s_lshl_b32 s39, s37, 7")
e("  s_add_u32 s38, s38, s39")
e("  s_lshl_b32 s40, s36, 13")
e("  v_lshrrev_b32 v3, 1, v2")
e("  v_and_b32 v4, 1, v2")
e("  v_lshlrev_b32 v5, 17, v3")
e("  v_lshl_add_u32 v5, v4, 12, v5")
e("  v_lshl_add_u32 v6, v1, 3, v5")
for s in range(4):
    e(f"  buffer_load_dwordx2 v[{64+2*s}:{65+2*s}], v6, s[20:23], s40 offen offset:{1024*s}")
    e(f"  buffer_load_dwordx2 v[{72+2*s}:{73+2*s}], v5, s[20:23], s40 offen offset:{1024*s+512}")
e("  v_lshrrev_b32 v7, 3, v0")
e("  v_and_b32 v8, 7, v0")
e("  v_lshlrev_b32 v8, 4, v8")
e("  v_lshl_add_u32 v9, v7, 10, v8")
for i in range(8):
    e(f"  buffer_load_dwordx4 v[{32+4*i}:{35+4*i}], v9, s[16:19], s38 offen")
    if i < 7:
        e("  s_add_u32 s38, s38, 0x8000")
e("  s_waitcnt vmcnt(8)")
e("  v_max3_f32 v10, v72, v74, v76")
e("  v_max_f32 v10, v10, v78")
for s in range(4):
    e(f"  v_sub_f32 v{72+2*s}, v{72+2*s}, v10")
    e(f"  v_mul_f32 v{72+2*s}, s45, v{72+2*s}")
    e(f"  v_exp_f32 v{72+2*s}, v{72+2*s}")
e("  s_nop 0")
e("  v_mul_f32 v11, v72, v73\n  v_mul_f32 v12, v72, v64\n  v_mul_f32 v13, v72, v65")
for s in range(1, 4):
    e(f"  v_fmac_f32 v11, v{72+2*s}, v{73+2*s}")
    e(f"  v_fmac_f32 v12, v{72+2*s}, v{64+2*s}")
    e(f"  v_fmac_f32 v13, v{72+2*s}, v{65+2*s}")
e("  v_rcp_f32 v14, v11")
e("  s_nop 0")
for r in (12, 13):
    e(f"  v_mul_f32 v15, v{r}, v14")
    e(f"  v_fma_f32 v16, -v15, v11, v{r}")
    e("  v_fma_f32 v15, v16, v14, v15")
    bf16r(r, 15)
e("  v_lshlrev_b32 v15, 10, v4")
e("  v_lshl_add_u32 v15, v1, 4, v15")
e("  v_lshl_add_u32 v15, v3, 2, v15")
e(f"  ds_write_b32 v15, v12 offset:{O_OFF}")
e(f"  ds_write_b32 v15, v13 offset:{O_OFF+8}")
e("  v_lshlrev_b32 v16, 3, v7")
for j in range(16):
    e(f"  v_mov_b32 v{96+j}, 0")
e("  s_waitcnt lgkmcnt(0)")
e("  s_barrier")
for i in range(8):
    e(f"  ds_read_b64 v[{64+2*i}:{65+2*i}], v16 offset:{O_OFF+256*i}")
e("  s_waitcnt vmcnt(0) lgkmcnt(0)")
for i in range(8):
    for j in range(4):
        e(f"  v_lshlrev_b32 v18, 16, v{32+4*i+j}")
        e(f"  v_and_b32 v19, 0xffff0000, v{32+4*i+j}")
        e(f"  v_fmac_f32 v{96+2*j}, v18, v{64+2*i}")
        e(f"  v_fmac_f32 v{97+2*j}, v19, v{64+2*i}")
        e(f"  v_fmac_f32 v{104+2*j}, v18, v{65+2*i}")
        e(f"  v_fmac_f32 v{105+2*j}, v19, v{65+2*i}")
e("  s_nop 1")
for j in range(16):
    e(f"  v_add_f32_dpp v{96+j}, v{96+j}, v{96+j} row_ror:8 row_mask:0xf bank_mask:0xf")
e("  v_lshrrev_b32 v17, 4, v0")
e("  v_lshlrev_b32 v17, 9, v17")
e("  v_and_b32 v18, 7, v0")
e("  v_lshl_add_u32 v17, v18, 5, v17")
e(f"  ds_write_b128 v17, v[96:99] offset:{RED}")
e(f"  ds_write_b128 v17, v[100:103] offset:{RED+16}")
e(f"  ds_write_b128 v17, v[104:107] offset:{RED+256}")
e(f"  ds_write_b128 v17, v[108:111] offset:{RED+256+16}")
e("  v_lshlrev_b32 v18, 2, v0")
e("  s_waitcnt lgkmcnt(0)")
e("  s_barrier")
e("  v_cmp_gt_u32 vcc, 128, v0")
e("  s_and_saveexec_b64 s[42:43], vcc")
e("  s_cbranch_execz B_w1")
for p in range(16):
    e(f"  ds_read_b32 v{32+p}, v18 offset:{RED+512*p}")
e("  v_lshlrev_b32 v19, 11, v2")
e("  v_lshl_add_u32 v19, v1, 2, v19")
e("  s_lshl_b32 s39, s37, 8")
e(f"  s_add_u32 s39, s39, {ACC_OFF}")
e("  s_waitcnt lgkmcnt(0)")
for p in range(1, 16):
    e(f"  v_add_f32 v32, v32, v{32+p}")
e("  buffer_atomic_add_f32 v32, v19, s[20:23], s39 offen sc0")
e("  s_waitcnt vmcnt(0)")
e("B_w1:")
e("  s_mov_b64 exec, s[42:43]")
e("  s_branch B_arrive")
e("B_ffn:")
RED2 = 16384
srd(28, 12, 1409024)
e("  s_sub_u32 s36, s2, 128")
e("  s_lshl_b32 s39, s36, 15")
e("  s_lshl_b32 s38, s36, 7")
e(f"  s_add_u32 s38, s38, {H_WS}")
e("  v_lshlrev_b32 v3, 5, v2")
e("  buffer_load_dwordx4 v[8:11], v3, s[20:23], s38 offen")
e("  buffer_load_dwordx4 v[12:15], v3, s[20:23], s38 offen offset:16")
e("  s_add_u32 s38, s38, 5504")
e("  buffer_load_dwordx4 v[16:19], v3, s[20:23], s38 offen")
e("  buffer_load_dwordx4 v[20:23], v3, s[20:23], s38 offen offset:16")
e("  v_lshlrev_b32 v7, 13, v2")
e("  v_lshl_add_u32 v7, v1, 4, v7")
e("  v_add_u32 v6, 4096, v7")
for i in range(8):
    e(f"  buffer_load_dwordx4 v[{96+4*i}:{99+4*i}], v{7 if i < 4 else 6}, s[28:31], s39 offen offset:{1024*(i%4)}")
for j in range(16):
    e(f"  v_mov_b32 v{128+j}, 0")
e("  v_lshlrev_b32 v30, 2, v0")
for i in range(8):
    e(f"  s_waitcnt vmcnt({7-i})")
    for j in range(4):
        e(f"  v_lshlrev_b32 v28, 16, v{96+4*i+j}")
        e(f"  v_and_b32 v29, 0xffff0000, v{96+4*i+j}")
        e(f"  v_fmac_f32 v{128+2*j}, v28, v{8+i}")
        e(f"  v_fmac_f32 v{129+2*j}, v29, v{8+i}")
        e(f"  v_fmac_f32 v{136+2*j}, v28, v{16+i}")
        e(f"  v_fmac_f32 v{137+2*j}, v29, v{16+i}")
e("  v_lshlrev_b32 v28, 12, v2")
e("  v_lshl_add_u32 v28, v1, 5, v28")
e(f"  ds_write_b128 v28, v[128:131] offset:{RED2}")
e(f"  ds_write_b128 v28, v[132:135] offset:{RED2+16}")
e(f"  ds_write_b128 v28, v[136:139] offset:{RED2+2048}")
e(f"  ds_write_b128 v28, v[140:143] offset:{RED2+2048+16}")
e("  s_waitcnt lgkmcnt(0)")
e("  s_barrier")
for k in range(4):
    for w in range(4):
        e(f"  ds_read_b32 v{32+4*k+w}, v30 offset:{RED2+4096*w+1024*k}")
e(f"  s_mov_b32 s39, {ACC_OFF+4096}")
e("  s_waitcnt lgkmcnt(0)")
for k in range(4):
    e(f"  v_add_f32 v{32+4*k}, v{32+4*k}, v{33+4*k}")
    e(f"  v_add_f32 v{34+4*k}, v{34+4*k}, v{35+4*k}")
    e(f"  v_add_f32 v{32+4*k}, v{32+4*k}, v{34+4*k}")
    e(f"  buffer_atomic_add_f32 v{32+4*k}, v30, s[20:23], s39 offen offset:{1024*k} sc0")
e("  s_waitcnt vmcnt(0)")
e("B_arrive:")
FLAG = 36864
e("  s_load_dwordx2 s[46:47], s[0:1], 80")
e("  s_load_dwordx2 s[48:49], s[0:1], 72")
e("  s_barrier")
e("  v_cmp_eq_u32 vcc, 0, v0")
e("  s_and_saveexec_b64 s[42:43], vcc")
e("  s_cbranch_execz B_a1")
e("  s_waitcnt lgkmcnt(0)")
srd(24, 46, 256)
e("  v_mov_b32 v3, 0")
e("  v_mov_b32 v4, 1")
e("  buffer_atomic_add v4, v3, s[24:27], 0 offen sc0")
e("  s_waitcnt vmcnt(0)")
e(f"  ds_write_b32 v3, v4 offset:{FLAG}")
e("  s_waitcnt lgkmcnt(0)")
e("B_a1:")
e("  s_mov_b64 exec, s[42:43]")
e("  v_mov_b32 v3, 0")
e("  s_barrier")
e(f"  ds_read_b32 v4, v3 offset:{FLAG}")
e("  s_waitcnt lgkmcnt(0)")
e("  v_readfirstlane_b32 s44, v4")
e("  s_cmp_lg_u32 s44, 170")
e("  s_cbranch_scc1 B_end")
srd(12, 4, 2048)
srd(16, 48, 2048)
e("  v_lshlrev_b32 v30, 2, v0")
e("  v_lshlrev_b32 v31, 1, v0")
e(f"  s_mov_b32 s38, {ACC_OFF}")
e(f"  s_mov_b32 s39, {ACC_OFF+4096}")
for k in range(4):
    e(f"  v_mov_b32 v{32+k}, 0")
    e(f"  v_mov_b32 v{36+k}, 0")
for k in range(4):
    e(f"  buffer_atomic_add_f32 v{32+k}, v30, s[20:23], s38 offen offset:{1024*k} sc0")
    e(f"  buffer_atomic_add_f32 v{36+k}, v30, s[20:23], s39 offen offset:{1024*k} sc0")
    e(f"  buffer_load_ushort v{40+k}, v31, s[12:15], 0 offen offset:{512*k}")
e("  s_waitcnt vmcnt(0)")
for k in range(4):
    s_, y_, x_, t_ = 32+k, 36+k, 40+k, 44
    bf16r(s_, s_)
    bf16r(y_, y_)
    e(f"  v_mul_f32 v{t_}, {f32(-1.4426950408889634)}, v{y_}")
    e(f"  v_exp_f32 v{t_}, v{t_}")
    e("  s_nop 0")
    e(f"  v_add_f32 v{t_}, 1.0, v{t_}")
    e(f"  v_rcp_f32 v{t_}, v{t_}")
    e("  s_nop 0")
    e(f"  v_mul_f32 v{t_}, v{t_}, v{y_}")
    bf16r(t_, t_)
    e(f"  v_mul_f32 v{t_}, v{t_}, v{s_}")
    bf16r(t_, t_)
    e(f"  v_lshlrev_b32 v{x_}, 16, v{x_}")
    e(f"  v_add_f32 v{t_}, v{t_}, v{x_}")
    e(f"  v_cvt_pk_bf16_f32 v{x_}, v{t_}, v{t_}")
    e(f"  buffer_store_short v{x_}, v31, s[16:19], 0 offen offset:{512*k}")
e("B_end:")
e("  s_endpgm")

e('.section .rodata,"a"')
for (k, nv, ns) in (("attn_kernel", 128, 72), ("proj_kernel", 168, 64)):
    e(".p2align 6")
    e(f".amdhsa_kernel {k}")
    e(f"  .amdhsa_next_free_vgpr {nv}")
    e(f"  .amdhsa_next_free_sgpr {ns}")
    e(f"  .amdhsa_accum_offset {nv}")
    e("  .amdhsa_group_segment_fixed_size 0")
    e("  .amdhsa_kernarg_size 96")
    e("  .amdhsa_user_sgpr_count 2")
    e("  .amdhsa_user_sgpr_kernarg_segment_ptr 1")
    e("  .amdhsa_system_sgpr_workgroup_id_x 1")
    e(".end_amdhsa_kernel")

dst = sys.argv[1] if len(sys.argv) > 1 else f"cdna_kernels/{NAME}.s"
open(dst, "w").write("\n".join(out) + "\n")
```

```python
import sys, struct

NAME = "recurrent_scan__mha_block_cached__geglu_ffn__decode"
out = []
def e(s=""):
    out.append(s)
def f32(x):
    return "0x%08x" % struct.unpack("<I", struct.pack("<f", x))[0]

LOG2E = f32(1.4426950408889634)
SCALE = f32(128 ** -0.5)

import os
NT = os.environ.get("NT", "nt")
NTS = (" " + NT) if NT else ""
WNT = os.environ.get("WNT", "")
WTS = (" " + WNT) if WNT else ""

PART_STRIDE = 1024
ACC_OFF = 256 * 1024
WS_SIZE = 0x40000000
GU_WS = ACC_OFF + 8192

def srd(d, p, size):
    e(f"  s_mov_b32 s{d}, s{p}")
    e(f"  s_and_b32 s{d+1}, s{p+1}, 0xffff")
    e(f"  s_mov_b32 s{d+2}, {size}")
    e(f"  s_mov_b32 s{d+3}, 0x00020000")

def row_allreduce(op, v):
    for sh in (8, 4, 2, 1):
        e("  s_nop 1")
        e(f"  {op}_dpp v{v}, v{v}, v{v} row_ror:{sh} row_mask:0xf bank_mask:0xf")

def wave_from_rows(op, v, s0):
    e("  s_nop 1")
    for k in range(4):
        e(f"  v_readlane_b32 s{s0+k}, v{v}, {16*k}")
    e("  s_nop 1")
    e(f"  v_mov_b32 v{v}, s{s0}")
    for k in range(1, 4):
        e(f"  {op} v{v}, s{s0+k}, v{v}")

def bf16r(dst, src):
    e(f"  v_cvt_pk_bf16_f32 v{dst}, v{src}, v{src}")
    e(f"  v_lshlrev_b32 v{dst}, 16, v{dst}")

def layernorm(xr, xf, t, s0):
    for j in range(4):
        e(f"  v_lshlrev_b32 v{xf+2*j}, 16, v{xr+j}")
        e(f"  v_and_b32 v{xf+2*j+1}, 0xffff0000, v{xr+j}")
    e(f"  v_add_f32 v{t}, v{xf}, v{xf+1}")
    for j in range(2, 8):
        e(f"  v_add_f32 v{t}, v{t}, v{xf+j}")
    row_allreduce("v_add_f32", t)
    wave_from_rows("v_add_f32", t, s0)
    e(f"  v_mul_f32 v{t}, {f32(1.0/512)}, v{t}")
    e(f"  v_sub_f32 v{t+2}, v{xf}, v{t}")
    e(f"  v_mul_f32 v{t+1}, v{t+2}, v{t+2}")
    for j in range(1, 8):
        e(f"  v_sub_f32 v{t+2}, v{xf+j}, v{t}")
        e(f"  v_fmac_f32 v{t+1}, v{t+2}, v{t+2}")
    row_allreduce("v_add_f32", t+1)
    wave_from_rows("v_add_f32", t+1, s0)
    e(f"  v_mul_f32 v{t+1}, {f32(1.0/512)}, v{t+1}")
    bf16r(t, t)
    bf16r(t+1, t+1)
    e(f"  v_add_f32 v{t+1}, {f32(1e-5)}, v{t+1}")
    bf16r(t+1, t+1)
    e(f"  v_sqrt_f32 v{t+1}, v{t+1}")
    e("  s_nop 0")
    bf16r(t+1, t+1)
    e(f"  v_rcp_f32 v{t+2}, v{t+1}")
    e("  s_nop 0")
    for j in range(8):
        e(f"  v_sub_f32 v{t+3}, v{xf+j}, v{t}")
        bf16r(t+3, t+3)
        e(f"  v_mul_f32 v{t+4}, v{t+3}, v{t+2}")
        e(f"  v_fma_f32 v{t+5}, -v{t+4}, v{t+1}, v{t+3}")
        e(f"  v_fma_f32 v{t+4}, v{t+5}, v{t+2}, v{t+4}")
        bf16r(xf+j, t+4)

def gelu_mul(g, u, d):
    e(f"  v_mul_f32 v{d}, v{g}, v{g}")
    e(f"  v_mul_f32 v{d}, v{d}, v{g}")
    e(f"  v_mul_f32 v{d}, {f32(0.044715)}, v{d}")
    e(f"  v_add_f32 v{d}, v{d}, v{g}")
    e(f"  v_mul_f32 v{d}, {f32(2*0.7978845608028654*1.4426950408889634)}, v{d}")
    e(f"  v_exp_f32 v{d}, v{d}")
    e("  s_nop 0")
    e(f"  v_add_f32 v{d}, 1.0, v{d}")
    e(f"  v_rcp_f32 v{d}, v{d}")
    e("  s_nop 0")
    e(f"  v_sub_f32 v{d}, 1.0, v{d}")
    e(f"  v_mul_f32 v{d}, v{d}, v{g}")
    bf16r(d, d)
    e(f"  v_mul_f32 v{d}, v{d}, v{u}")
    bf16r(d, d)

NWG_A = 256
e(f"; @launch kernel=attn_kernel grid=({NWG_A},1,1) block=(1024,1,1) lds=77824")
e("; @launch kernel=proj_kernel grid=(171,1,1) block=(256,1,1) lds=40960")
e('.amdgcn_target "amdgcn-amd-amdhsa--gfx950"')
e(".text")

QRED = 0
Q2 = 32768
ML = 36864
XN = 37888
FRED = 43008

K0, V0, WQ0 = 32, 64, 96
Q, ACC, M, L, S = 4, 8, 16, 17, 18
PLO, PHI, T = 96, 104, 112
VO0, VO1 = 2, 3
NBLK = 8

e(".globl attn_kernel\n.p2align 8\n.type attn_kernel,@function\nattn_kernel:")
e(f"  s_cmp_ge_u32 s2, {NWG_A}")
e("  s_cbranch_scc1 A_end")
e("  s_load_dwordx8 s[4:11], s[0:1], 0")
e("  s_load_dwordx2 s[12:13], s[0:1], 88")
e("  s_load_dwordx4 s[52:55], s[0:1], 48")
e("  v_and_b32 v1, 63, v0")
e("  v_lshrrev_b32 v26, 6, v0")
e("  s_lshr_b32 s37, s2, 2")
e("  s_lshr_b32 s38, s37, 5")
e("  s_and_b32 s39, s37, 31")
if int(os.environ.get("ILV", "1")) == 2:
    e("  s_lshl_b32 s36, s37, 22")
    e("  s_and_b32 s40, s2, 3")
    e("  s_lshl_b32 s40, s40, 17")
    e("  s_add_u32 s36, s36, s40")
else:
    e("  s_lshl_b32 s36, s2, 20")
e("  s_lshl_b32 s40, s38, 10")
e("  s_lshl_b32 s41, s39, 8")
e("  v_lshlrev_b32 v27, 4, v1")
ILV = int(os.environ.get("ILV", "1"))
STEP = {0: 8192, 1: 131072, 2: 524288}[ILV]
e(f"  v_lshl_add_u32 v{VO0}, v26, {13 if ILV else 16}, v27")
e(f"  v_add_u32 v{VO1}, 4096, v{VO0}")
e("  v_lshrrev_b32 v28, 4, v0")
e("  v_and_b32 v29, 15, v0")
e("  v_lshlrev_b32 v29, 4, v29")
e("  v_lshl_add_u32 v28, v28, 13, v29")
e("  s_waitcnt lgkmcnt(0)")
srd(16, 6, 0x10000000)
srd(20, 8, 0x10000000)
srd(24, 10, 0x400000)
srd(28, 4, 2048)
srd(32, 12, WS_SIZE)
e("  s_cmp_lt_u32 s2, 176")
e("  s_cselect_b32 s51, %d, 0" % (0 if os.environ.get("NOFFN") else 1409024))
e("  s_mov_b32 s56, s52\n  s_and_b32 s57, s53, 0xffff\n  s_mov_b32 s58, s51\n  s_mov_b32 s59, 0x00020000")
e("  s_mov_b32 s60, s54\n  s_and_b32 s61, s55, 0xffff\n  s_mov_b32 s62, s51\n  s_mov_b32 s63, 0x00020000")
e("  s_and_b32 s65, s2, 7")
e("  s_lshr_b32 s66, s2, 3")
e(f"  s_mul_i32 s49, s65, {64*2752}")
e("  s_lshl_b32 s50, s66, 7")
e("  s_add_u32 s49, s49, s50")
e("  v_and_b32 v29, 511, v0")
e("  v_lshrrev_b32 v29, 3, v29")
e("  s_movk_i32 s48, 2752")
e("  v_mul_lo_u32 v29, v29, s48")
e("  v_and_b32 v30, 7, v0")
e("  v_lshl_add_u32 v29, v30, 4, v29")
e("  v_readfirstlane_b32 s64, v26")

def kv_loads(base, rsrc, lo=0, hi=8):
    for i in range(lo, hi):
        vo = VO0 if i < 4 else VO1
        e(f"  buffer_load_dwordx4 v[{base+4*i}:{base+4*i+3}], v{vo}, s[{rsrc}:{rsrc+3}], s36 offen offset:{1024*(i%4)}{NTS}")

e("  buffer_load_dwordx4 v[16:19], v27, s[28:31], 0 offen")
e("  buffer_load_dwordx4 v[4:7], v27, s[28:31], 0 offen offset:1024")
for i in range(8):
    e(f"  buffer_load_dwordx4 v[{WQ0+4*i}:{WQ0+4*i+3}], v28, s[24:27], s41 offen{WTS}")
    if i < 7:
        e("  s_add_u32 s41, s41, 0x80000")
e("  s_cmp_ge_u32 s64, 8")
e("  s_cbranch_scc1 A_ldu")
e(f"  buffer_load_dwordx4 v[92:95], v29, s[56:59], s49 offen{WTS}")
e("  s_branch A_ldd")
e("A_ldu:")
e(f"  buffer_load_dwordx4 v[92:95], v29, s[60:63], s49 offen{WTS}")
e("A_ldd:")
kv_loads(K0, 16)
kv_loads(V0, 20, 0, 7)
e("  s_cmp_lg_u32 s2, 0")
e("  s_cbranch_scc1 A_nozero")
e("  v_cmp_gt_u32 vcc, 512, v0")
e("  s_and_saveexec_b64 s[42:43], vcc")
e("  s_cbranch_execz A_zrest")
e("  v_mov_b32 v20, 0\n  v_mov_b32 v21, 0\n  v_mov_b32 v22, 0\n  v_mov_b32 v23, 0")
e("  v_lshlrev_b32 v24, 4, v0")
e(f"  v_add_u32 v24, {ACC_OFF}, v24")
e("  buffer_store_dwordx4 v[20:23], v24, s[32:35], 0 offen")
e("A_zrest:")
e("  s_mov_b64 exec, s[42:43]")
e("  s_nop 1")
e("A_nozero:")
e("  s_waitcnt vmcnt(24)")
layernorm(16, 8, 20, 44)
e("  v_lshlrev_b32 v30, 5, v1")
e(f"  ds_write_b128 v30, v[8:11] offset:{XN}")
e(f"  ds_write_b128 v30, v[12:15] offset:{XN+16}")
layernorm(4, 8, 20, 44)
e(f"  ds_write_b128 v30, v[8:11] offset:{XN+2048}")
e(f"  ds_write_b128 v30, v[12:15] offset:{XN+2048+16}")
e("  v_lshrrev_b32 v31, 4, v0")
e("  v_lshlrev_b32 v31, 2, v31")
e("  s_lshl_b32 s40, s38, 11")
e("  v_add_u32 v31, s40, v31")
e("  v_and_b32 v30, 511, v0")
e("  v_lshrrev_b32 v30, 3, v30")
e("  s_lshl_b32 s40, s65, 8")
e("  v_lshl_add_u32 v30, v30, 2, s40")
e("  s_waitcnt lgkmcnt(0)")
for i in range(8):
    e(f"  ds_read_b32 v{16+i}, v31 offset:{XN+256*i}")
e(f"  ds_read_b32 v27, v30 offset:{XN}")
e(f"  ds_read_b32 v28, v30 offset:{XN+2048}")
for j in range(8):
    e(f"  v_mov_b32 v{8+j}, 0")
e("  s_waitcnt vmcnt(16) lgkmcnt(0)")
for i in range(8):
    for j in range(4):
        e(f"  v_lshlrev_b32 v24, 16, v{WQ0+4*i+j}")
        e(f"  v_and_b32 v25, 0xffff0000, v{WQ0+4*i+j}")
        e(f"  v_fmac_f32 v{8+2*j}, v24, v{16+i}")
        e(f"  v_fmac_f32 v{8+2*j+1}, v25, v{16+i}")
e("  v_lshlrev_b32 v30, 5, v0")
e(f"  ds_write_b128 v30, v[8:11] offset:{QRED}")
e(f"  ds_write_b128 v30, v[12:15] offset:{QRED+16}")
e("  s_waitcnt vmcnt(15)")
for j in range(4):
    e(f"  v_lshlrev_b32 v{112+2*j}, 16, v{92+j}")
    e(f"  v_and_b32 v{113+2*j}, 0xffff0000, v{92+j}")
for j in range(8):
    e(f"  v_mul_f32 v{96+j}, v{112+j}, v27")
    e(f"  v_mul_f32 v{104+j}, v{112+j}, v28")
kv_loads(V0, 20, 7, 8)
e(f"  s_add_u32 s36, s36, {STEP}")
for j in range(16):
    e(f"  v_add_f32_dpp v{96+j}, v{96+j}, v{96+j} row_ror:8 row_mask:0xf bank_mask:0xf")
e("  v_lshrrev_b32 v24, 4, v0")
e("  v_lshlrev_b32 v24, 9, v24")
e("  v_and_b32 v25, 7, v0")
e("  v_lshl_add_u32 v24, v25, 5, v24")
e(f"  ds_write_b128 v24, v[96:99] offset:{FRED}")
e(f"  ds_write_b128 v24, v[100:103] offset:{FRED+16}")
e(f"  ds_write_b128 v24, v[104:107] offset:{FRED+256}")
e(f"  ds_write_b128 v24, v[108:111] offset:{FRED+256+16}")
e("  v_and_b32 v24, 127, v0")
e("  v_lshrrev_b32 v25, 7, v0")
e("  v_lshlrev_b32 v24, 2, v24")
e("  v_lshl_add_u32 v31, v25, 12, v24")
e("  s_waitcnt lgkmcnt(0)")
e("  s_barrier")
for r in range(8):
    e(f"  ds_read_b32 v{16+r}, v31 offset:{QRED+512*r}")
e("  v_lshlrev_b32 v29, 2, v0")
e("  s_waitcnt lgkmcnt(0)")
for r in range(1, 8):
    e(f"  v_add_f32 v16, v16, v{16+r}")
e(f"  ds_write_b32 v29, v16 offset:{Q2}")
e("  s_cmp_ge_u32 s64, 4")
e("  s_cbranch_scc1 A_nf1")
e("  s_cmp_ge_u32 s2, 176")
e("  s_cbranch_scc1 A_nf1")
e("  v_lshrrev_b32 v24, 7, v0")
e("  v_and_b32 v25, 127, v0")
e("  v_lshlrev_b32 v24, 14, v24")
e("  v_lshl_add_u32 v24, v25, 2, v24")
for p in range(32):
    e(f"  ds_read_b32 v{96+p}, v24 offset:{FRED+512*p}")
e("  s_lshl_b32 s48, s65, 2")
e("  s_add_u32 s48, s48, s64")
e("  s_mul_i32 s48, s48, 5632")
e("  s_lshl_b32 s49, s66, 8")
e("  s_add_u32 s48, s48, s49")
e(f"  s_add_u32 s48, s48, {GU_WS}")
e("  v_lshlrev_b32 v25, 2, v1")
e("  s_waitcnt lgkmcnt(0)")
for p in range(1, 32):
    e(f"  v_add_f32 v96, v96, v{96+p}")
e("  buffer_store_dword v96, v25, s[32:35], s48 offen")
e("A_nf1:")
e("  v_and_b32 v24, 15, v1")
e("  v_lshlrev_b32 v24, 5, v24")
e("  s_waitcnt lgkmcnt(0)")
e("  s_barrier")
for jj in range(8):
    e(f"  ds_read_b128 v[{WQ0+8*(jj%4)}:{WQ0+8*(jj%4)+3}], v24 offset:{Q2+512*jj}")
    e(f"  ds_read_b128 v[{WQ0+8*(jj%4)+4}:{WQ0+8*(jj%4)+7}], v24 offset:{Q2+512*jj+16}")
    if jj % 4 == 3:
        e("  s_waitcnt lgkmcnt(0)")
        for k in range(4):
            for j in range(8):
                if jj == 3 and k == 0:
                    e(f"  v_mov_b32 v{8+j}, v{WQ0+j}")
                else:
                    e(f"  v_add_f32 v{8+j}, v{8+j}, v{WQ0+8*k+j}")
for j in range(4):
    e(f"  v_cvt_pk_bf16_f32 v{Q+j}, v{8+2*j}, v{8+2*j+1}")
for j in range(8):
    e(f"  v_mov_b32 v{ACC+j}, 0")
e(f"  v_mov_b32 v{M}, 0xff800000")
e(f"  v_mov_b32 v{L}, 0")
e(f"  s_mov_b32 s44, {SCALE}")
e(f"  s_mov_b32 s45, {LOG2E}")
e("  s_mov_b32 s46, 0")

PURE = int(os.environ.get("PURE", "0"))
def block(last):
    if PURE:
        e("  s_waitcnt vmcnt(8)")
        e(f"  v_add_f32 v{ACC}, v{K0}, v{ACC}")
        if not last:
            kv_loads(K0, 16)
        e("  s_waitcnt vmcnt(0)" if last else "  s_waitcnt vmcnt(8)")
        e(f"  v_add_f32 v{ACC}, v{V0}, v{ACC}")
        if not last:
            kv_loads(V0, 20)
            e(f"  s_add_u32 s36, s36, {STEP}")
        return
    e("  s_waitcnt vmcnt(8)")
    for t in range(4):
        for i in range(8):
            c = "0" if t == 0 else f"v{S+i}"
            e(f"  v_dot2_f32_bf16 v{S+i}, v{K0+4*i+t}, v{Q+t}, {c}")
    if not last:
        kv_loads(K0, 16)
    for sh in (8, 4, 2, 1):
        for i in range(8):
            e(f"  v_add_f32_dpp v{S+i}, v{S+i}, v{S+i} row_ror:{sh} row_mask:0xf bank_mask:0xf")
    for rnd in range(2):
        for p in range(4):
            e(f"  v_cvt_pk_bf16_f32 v{T+p}, v{S+2*p}, v{S+2*p+1}")
        for p in range(4):
            e(f"  v_lshlrev_b32 v{S+2*p}, 16, v{T+p}")
            e(f"  v_and_b32 v{S+2*p+1}, 0xffff0000, v{T+p}")
        if rnd == 0:
            for i in range(8):
                e(f"  v_mul_f32 v{S+i}, s44, v{S+i}")
    MN, A = T+4, T+5
    e(f"  v_max3_f32 v{MN}, v{M}, v{S}, v{S+1}")
    for p in range(1, 4):
        e(f"  v_max3_f32 v{MN}, v{MN}, v{S+2*p}, v{S+2*p+1}")
    e(f"  v_sub_f32 v{A}, v{M}, v{MN}")
    for i in range(8):
        e(f"  v_sub_f32 v{S+i}, v{S+i}, v{MN}")
    e(f"  v_mul_f32 v{A}, s45, v{A}")
    for i in range(8):
        e(f"  v_mul_f32 v{S+i}, s45, v{S+i}")
    e(f"  v_exp_f32 v{A}, v{A}")
    for i in range(8):
        e(f"  v_exp_f32 v{S+i}, v{S+i}")
    e(f"  v_mov_b32 v{M}, v{MN}")
    for j in range(8):
        e(f"  v_mul_f32 v{ACC+j}, v{ACC+j}, v{A}")
    for p in range(4):
        e(f"  v_add_f32 v{T+p}, v{S+2*p}, v{S+2*p+1}")
    e(f"  v_add_f32 v{T}, v{T}, v{T+1}")
    e(f"  v_add_f32 v{T+2}, v{T+2}, v{T+3}")
    e(f"  v_add_f32 v{T}, v{T}, v{T+2}")
    e(f"  v_fma_f32 v{L}, v{L}, v{A}, v{T}")
    for i in range(8):
        e(f"  v_cvt_pk_bf16_f32 v{PLO+i}, v{S+i}, 0")
        e(f"  v_cvt_pk_bf16_f32 v{PHI+i}, 0, v{S+i}")
    e("  s_waitcnt vmcnt(0)" if last else "  s_waitcnt vmcnt(8)")
    for i in range(8):
        for t in range(4):
            e(f"  v_dot2_f32_bf16 v{ACC+2*t}, v{V0+4*i+t}, v{PLO+i}, v{ACC+2*t}")
            e(f"  v_dot2_f32_bf16 v{ACC+2*t+1}, v{V0+4*i+t}, v{PHI+i}, v{ACC+2*t+1}")
    if not last:
        kv_loads(V0, 20)
        e(f"  s_add_u32 s36, s36, {STEP}")

e("A_loop:")
block(False)
e("  s_add_u32 s46, s46, 1")
e(f"  s_cmp_lt_u32 s46, {NBLK-1}")
e("  s_cbranch_scc1 A_loop")
block(True)
e("  s_nop 3")
e(f"  v_mov_b32 v20, v{M}")
wave_from_rows("v_max_f32", 20, 48)
e(f"  v_sub_f32 v21, v{M}, v20")
e("  v_mul_f32 v21, s45, v21")
e("  v_exp_f32 v21, v21")
e("  s_nop 0")
e(f"  v_mul_f32 v{L}, v{L}, v21")
for j in range(8):
    e(f"  v_mul_f32 v{ACC+j}, v{ACC+j}, v21")
wave_from_rows("v_add_f32", L, 48)
e("  v_lshlrev_b32 v30, 5, v0")
e(f"  ds_write_b128 v30, v[{ACC}:{ACC+3}] offset:{QRED}")
e(f"  ds_write_b128 v30, v[{ACC+4}:{ACC+7}] offset:{QRED+16}")
e("  v_lshlrev_b32 v29, 2, v26")
e(f"  ds_write_b32 v29, v20 offset:{ML}")
e(f"  ds_write_b32 v29, v{L} offset:{ML+64}")
e("  v_mov_b32 v24, 0")
e("  v_lshrrev_b32 v25, 7, v0")
e("  v_lshlrev_b32 v28, 3, v25")
e("  s_waitcnt lgkmcnt(0)")
e("  s_barrier")
for k in range(4):
    e(f"  ds_read_b128 v[{32+4*k}:{35+4*k}], v24 offset:{ML+16*k}")
e(f"  ds_read_b64 v[48:49], v28 offset:{ML}")
for r in range(8):
    e(f"  ds_read_b32 v{50+r}, v31 offset:{QRED+512*r}")
e("  s_waitcnt lgkmcnt(0)")
e("  v_max3_f32 v60, v32, v33, v34")
for k in range(35, 47, 2):
    e(f"  v_max3_f32 v60, v60, v{k}, v{k+1}")
e("  v_max_f32 v60, v60, v47")
e("  v_sub_f32 v48, v48, v60\n  v_sub_f32 v49, v49, v60")
e("  v_mul_f32 v48, s45, v48\n  v_mul_f32 v49, s45, v49")
e("  v_exp_f32 v48, v48\n  v_exp_f32 v49, v49")
e("  v_add_f32 v50, v50, v51\n  v_add_f32 v52, v52, v53\n  v_add_f32 v54, v54, v55\n  v_add_f32 v56, v56, v57")
e("  v_add_f32 v50, v50, v52\n  v_add_f32 v54, v54, v56")
e("  v_mul_f32 v50, v50, v48")
e("  v_fmac_f32 v50, v54, v49")
e("  v_lshlrev_b32 v29, 2, v0")
e(f"  ds_write_b32 v29, v50 offset:{Q2}")
e("  s_waitcnt lgkmcnt(0)")
e("  s_barrier")
e("  v_cmp_gt_u32 vcc, 128, v0")
e("  s_and_saveexec_b64 s[42:43], vcc")
e("  s_cbranch_execz A_end")
for r in range(8):
    e(f"  ds_read_b32 v{50+r}, v29 offset:{Q2+512*r}")
for k in range(4):
    e(f"  ds_read_b128 v[{64+4*k}:{67+4*k}], v24 offset:{ML+64+16*k}")
e("  s_waitcnt lgkmcnt(0)")
for r in range(1, 8):
    e(f"  v_add_f32 v50, v50, v{50+r}")
e("  v_mov_b32 v61, 0")
for k in range(16):
    e(f"  v_sub_f32 v{32+k}, v{32+k}, v60")
    e(f"  v_mul_f32 v{32+k}, s45, v{32+k}")
    e(f"  v_exp_f32 v{32+k}, v{32+k}")
    e("  s_nop 0")
    e(f"  v_fmac_f32 v61, v{32+k}, v{64+k}")
e("  s_lshl_b32 s47, s2, 10")
e("  buffer_store_dword v50, v29, s[32:35], s47 offen")
e("  v_cmp_eq_u32 vcc, 0, v0")
e("  s_and_saveexec_b64 s[42:43], vcc")
e("  s_cbranch_execz A_end")
e("  buffer_store_dwordx2 v[60:61], v24, s[32:35], s47 offen offset:512")
e("A_end:")
e("  s_endpgm")

e(".globl proj_kernel\n.p2align 8\n.type proj_kernel,@function\nproj_kernel:")
e("  s_cmp_ge_u32 s2, 171")
e("  s_cbranch_scc1 B_end")
e("  s_load_dwordx2 s[4:5], s[0:1], 0")
e("  s_load_dwordx2 s[6:7], s[0:1], 32")
e("  s_load_dwordx4 s[8:11], s[0:1], 48")
e("  s_load_dwordx2 s[12:13], s[0:1], 64")
e("  s_load_dwordx2 s[14:15], s[0:1], 88")
e("  v_and_b32 v1, 63, v0")
e("  v_lshrrev_b32 v2, 6, v0")
e(f"  s_mov_b32 s45, {LOG2E}")
e("  s_waitcnt lgkmcnt(0)")
srd(20, 14, WS_SIZE)
e("  s_cmp_ge_u32 s2, 128")
e("  s_cbranch_scc1 B_ffn")
O_OFF, RED = 0, 2048
srd(16, 6, 0x400000)
e("  s_lshr_b32 s36, s2, 3")
e("  s_and_b32 s37, s2, 7")
e("  s_lshl_b32 s38, s36, 18")
e("  s_lshl_b32 s39, s37, 7")
e("  s_add_u32 s38, s38, s39")
e("  s_lshl_b32 s40, s36, 13")
e("  v_lshrrev_b32 v3, 1, v2")
e("  v_and_b32 v4, 1, v2")
e("  v_lshlrev_b32 v5, 17, v3")
e("  v_lshl_add_u32 v5, v4, 12, v5")
e("  v_lshl_add_u32 v6, v1, 3, v5")
for s in range(4):
    e(f"  buffer_load_dwordx2 v[{64+2*s}:{65+2*s}], v6, s[20:23], s40 offen offset:{1024*s}")
    e(f"  buffer_load_dwordx2 v[{72+2*s}:{73+2*s}], v5, s[20:23], s40 offen offset:{1024*s+512}")
e("  v_lshrrev_b32 v7, 3, v0")
e("  v_and_b32 v8, 7, v0")
e("  v_lshlrev_b32 v8, 4, v8")
e("  v_lshl_add_u32 v9, v7, 10, v8")
for i in range(8):
    e(f"  buffer_load_dwordx4 v[{32+4*i}:{35+4*i}], v9, s[16:19], s38 offen{WTS}")
    if i < 7:
        e("  s_add_u32 s38, s38, 0x8000")
e("  s_waitcnt vmcnt(8)")
e("  v_max3_f32 v10, v72, v74, v76")
e("  v_max_f32 v10, v10, v78")
for s in range(4):
    e(f"  v_sub_f32 v{72+2*s}, v{72+2*s}, v10")
    e(f"  v_mul_f32 v{72+2*s}, s45, v{72+2*s}")
    e(f"  v_exp_f32 v{72+2*s}, v{72+2*s}")
e("  s_nop 0")
e("  v_mul_f32 v11, v72, v73\n  v_mul_f32 v12, v72, v64\n  v_mul_f32 v13, v72, v65")
for s in range(1, 4):
    e(f"  v_fmac_f32 v11, v{72+2*s}, v{73+2*s}")
    e(f"  v_fmac_f32 v12, v{72+2*s}, v{64+2*s}")
    e(f"  v_fmac_f32 v13, v{72+2*s}, v{65+2*s}")
e("  v_rcp_f32 v14, v11")
e("  s_nop 0")
for r in (12, 13):
    e(f"  v_mul_f32 v15, v{r}, v14")
    e(f"  v_fma_f32 v16, -v15, v11, v{r}")
    e("  v_fma_f32 v15, v16, v14, v15")
    bf16r(r, 15)
e("  v_lshlrev_b32 v15, 10, v4")
e("  v_lshl_add_u32 v15, v1, 4, v15")
e("  v_lshl_add_u32 v15, v3, 2, v15")
e(f"  ds_write_b32 v15, v12 offset:{O_OFF}")
e(f"  ds_write_b32 v15, v13 offset:{O_OFF+8}")
e("  v_lshlrev_b32 v16, 3, v7")
for j in range(16):
    e(f"  v_mov_b32 v{96+j}, 0")
e("  s_waitcnt lgkmcnt(0)")
e("  s_barrier")
for i in range(8):
    e(f"  ds_read_b64 v[{64+2*i}:{65+2*i}], v16 offset:{O_OFF+256*i}")
e("  s_waitcnt vmcnt(0) lgkmcnt(0)")
for i in range(8):
    for j in range(4):
        e(f"  v_lshlrev_b32 v18, 16, v{32+4*i+j}")
        e(f"  v_and_b32 v19, 0xffff0000, v{32+4*i+j}")
        e(f"  v_fmac_f32 v{96+2*j}, v18, v{64+2*i}")
        e(f"  v_fmac_f32 v{97+2*j}, v19, v{64+2*i}")
        e(f"  v_fmac_f32 v{104+2*j}, v18, v{65+2*i}")
        e(f"  v_fmac_f32 v{105+2*j}, v19, v{65+2*i}")
e("  s_nop 1")
for j in range(16):
    e(f"  v_add_f32_dpp v{96+j}, v{96+j}, v{96+j} row_ror:8 row_mask:0xf bank_mask:0xf")
e("  v_lshrrev_b32 v17, 4, v0")
e("  v_lshlrev_b32 v17, 9, v17")
e("  v_and_b32 v18, 7, v0")
e("  v_lshl_add_u32 v17, v18, 5, v17")
e(f"  ds_write_b128 v17, v[96:99] offset:{RED}")
e(f"  ds_write_b128 v17, v[100:103] offset:{RED+16}")
e(f"  ds_write_b128 v17, v[104:107] offset:{RED+256}")
e(f"  ds_write_b128 v17, v[108:111] offset:{RED+256+16}")
e("  v_lshlrev_b32 v18, 2, v0")
e("  s_waitcnt lgkmcnt(0)")
e("  s_barrier")
e("  v_cmp_gt_u32 vcc, 128, v0")
e("  s_and_saveexec_b64 s[42:43], vcc")
e("  s_cbranch_execz B_w1")
for p in range(16):
    e(f"  ds_read_b32 v{32+p}, v18 offset:{RED+512*p}")
e("  v_lshlrev_b32 v19, 11, v2")
e("  v_lshl_add_u32 v19, v1, 2, v19")
e("  s_lshl_b32 s39, s37, 8")
e(f"  s_add_u32 s39, s39, {ACC_OFF}")
e("  s_waitcnt lgkmcnt(0)")
for p in range(1, 16):
    e(f"  v_add_f32 v32, v32, v{32+p}")
e("  buffer_atomic_add_f32 v32, v19, s[20:23], s39 offen sc0")
e("  s_waitcnt vmcnt(0)")
e("B_w1:")
e("  s_mov_b64 exec, s[42:43]")
e("  s_branch B_arrive")
e("B_ffn:")
RED2 = 16384
srd(28, 12, 1409024)
e("  s_sub_u32 s36, s2, 128")
e("  s_lshl_b32 s39, s36, 15")
H_OFF = 0
e("  s_lshl_b32 s38, s36, 7")
e(f"  s_add_u32 s38, s38, {GU_WS}")
e("  v_lshrrev_b32 v3, 5, v1")
e("  v_and_b32 v4, 31, v1")
e("  s_movk_i32 s40, 5632")
e("  v_mul_lo_u32 v5, v3, s40")
e("  v_lshl_add_u32 v5, v4, 2, v5")
e("  v_add_u32 v8, 11264, v5")
e("  v_readfirstlane_b32 s41, v2")
e("  s_cmp_lg_u32 s41, 0")
e("  s_cbranch_scc1 B_d0")
for rg in range(8):
    e(f"  buffer_load_dword v{32+rg}, v5, s[20:23], s38 offen")
    e(f"  buffer_load_dword v{40+rg}, v8, s[20:23], s38 offen")
    if rg < 7:
        e(f"  s_add_u32 s38, s38, {4*5632}")
e("B_d0:")
e("  v_lshlrev_b32 v7, 13, v2")
e("  v_lshl_add_u32 v7, v1, 4, v7")
e("  v_add_u32 v6, 4096, v7")
for i in range(8):
    e(f"  buffer_load_dwordx4 v[{96+4*i}:{99+4*i}], v{7 if i < 4 else 6}, s[28:31], s39 offen offset:{1024*(i%4)}{WTS}")
e("  s_cmp_lg_u32 s41, 0")
e("  s_cbranch_scc1 B_d1")
e("  s_waitcnt vmcnt(8)")
for rg in range(1, 8):
    e(f"  v_add_f32 v32, v32, v{32+rg}")
    e(f"  v_add_f32 v40, v40, v{40+rg}")
bf16r(32, 32)
bf16r(40, 40)
gelu_mul(32, 40, 34)
e("  v_lshlrev_b32 v4, 3, v4")
e("  v_lshl_add_u32 v4, v3, 2, v4")
e(f"  ds_write_b32 v4, v34 offset:{H_OFF}")
e("  s_waitcnt lgkmcnt(0)")
e("B_d1:")
for j in range(16):
    e(f"  v_mov_b32 v{128+j}, 0")
e("  v_lshlrev_b32 v30, 2, v0")
e("  v_lshlrev_b32 v27, 6, v2")
e("  s_barrier")
for i in range(8):
    e(f"  ds_read_b64 v[{8+2*i}:{9+2*i}], v27 offset:{H_OFF+8*i}")
e("  s_waitcnt lgkmcnt(0)")
for i in range(8):
    e(f"  s_waitcnt vmcnt({7-i})")
    for j in range(4):
        e(f"  v_lshlrev_b32 v28, 16, v{96+4*i+j}")
        e(f"  v_and_b32 v29, 0xffff0000, v{96+4*i+j}")
        e(f"  v_fmac_f32 v{128+2*j}, v28, v{8+2*i}")
        e(f"  v_fmac_f32 v{129+2*j}, v29, v{8+2*i}")
        e(f"  v_fmac_f32 v{136+2*j}, v28, v{9+2*i}")
        e(f"  v_fmac_f32 v{137+2*j}, v29, v{9+2*i}")
e("  v_lshlrev_b32 v28, 12, v2")
e("  v_lshl_add_u32 v28, v1, 5, v28")
e(f"  ds_write_b128 v28, v[128:131] offset:{RED2}")
e(f"  ds_write_b128 v28, v[132:135] offset:{RED2+16}")
e(f"  ds_write_b128 v28, v[136:139] offset:{RED2+2048}")
e(f"  ds_write_b128 v28, v[140:143] offset:{RED2+2048+16}")
e("  s_waitcnt lgkmcnt(0)")
e("  s_barrier")
for k in range(4):
    for w in range(4):
        e(f"  ds_read_b32 v{32+4*k+w}, v30 offset:{RED2+4096*w+1024*k}")
e(f"  s_mov_b32 s39, {ACC_OFF+4096}")
e("  s_waitcnt lgkmcnt(0)")
for k in range(4):
    e(f"  v_add_f32 v{32+4*k}, v{32+4*k}, v{33+4*k}")
    e(f"  v_add_f32 v{34+4*k}, v{34+4*k}, v{35+4*k}")
    e(f"  v_add_f32 v{32+4*k}, v{32+4*k}, v{34+4*k}")
    e(f"  buffer_atomic_add_f32 v{32+4*k}, v30, s[20:23], s39 offen offset:{1024*k} sc0")
e("  s_waitcnt vmcnt(0)")
e("B_arrive:")
FLAG = 36864
e("  s_load_dwordx2 s[46:47], s[0:1], 80")
e("  s_load_dwordx2 s[48:49], s[0:1], 72")
e("  s_barrier")
e("  v_cmp_eq_u32 vcc, 0, v0")
e("  s_and_saveexec_b64 s[42:43], vcc")
e("  s_cbranch_execz B_a1")
e("  s_waitcnt lgkmcnt(0)")
srd(24, 46, 256)
e("  v_mov_b32 v3, 0")
e("  v_mov_b32 v4, 1")
e("  buffer_atomic_add v4, v3, s[24:27], 0 offen sc0")
e("  s_waitcnt vmcnt(0)")
e(f"  ds_write_b32 v3, v4 offset:{FLAG}")
e("  s_waitcnt lgkmcnt(0)")
e("B_a1:")
e("  s_mov_b64 exec, s[42:43]")
e("  v_mov_b32 v3, 0")
e("  s_barrier")
e(f"  ds_read_b32 v4, v3 offset:{FLAG}")
e("  s_waitcnt lgkmcnt(0)")
e("  v_readfirstlane_b32 s44, v4")
e("  s_cmp_lg_u32 s44, 170")
e("  s_cbranch_scc1 B_end")
srd(12, 4, 2048)
srd(16, 48, 2048)
e("  v_lshlrev_b32 v30, 2, v0")
e("  v_lshlrev_b32 v31, 1, v0")
e(f"  s_mov_b32 s38, {ACC_OFF}")
e(f"  s_mov_b32 s39, {ACC_OFF+4096}")
for k in range(4):
    e(f"  v_mov_b32 v{32+k}, 0")
    e(f"  v_mov_b32 v{36+k}, 0")
for k in range(4):
    e(f"  buffer_atomic_add_f32 v{32+k}, v30, s[20:23], s38 offen offset:{1024*k} sc0")
    e(f"  buffer_atomic_add_f32 v{36+k}, v30, s[20:23], s39 offen offset:{1024*k} sc0")
    e(f"  buffer_load_ushort v{40+k}, v31, s[12:15], 0 offen offset:{512*k}")
e("  s_waitcnt vmcnt(0)")
for k in range(4):
    s_, y_, x_, t_ = 32+k, 36+k, 40+k, 44
    bf16r(s_, s_)
    bf16r(y_, y_)
    e(f"  v_mul_f32 v{t_}, {f32(-1.4426950408889634)}, v{y_}")
    e(f"  v_exp_f32 v{t_}, v{t_}")
    e("  s_nop 0")
    e(f"  v_add_f32 v{t_}, 1.0, v{t_}")
    e(f"  v_rcp_f32 v{t_}, v{t_}")
    e("  s_nop 0")
    e(f"  v_mul_f32 v{t_}, v{t_}, v{y_}")
    bf16r(t_, t_)
    e(f"  v_mul_f32 v{t_}, v{t_}, v{s_}")
    bf16r(t_, t_)
    e(f"  v_lshlrev_b32 v{x_}, 16, v{x_}")
    e(f"  v_add_f32 v{t_}, v{t_}, v{x_}")
    e(f"  v_cvt_pk_bf16_f32 v{x_}, v{t_}, v{t_}")
    e(f"  buffer_store_short v{x_}, v31, s[16:19], 0 offen offset:{512*k}")
e("B_end:")
e("  s_endpgm")

e('.section .rodata,"a"')
for (k, nv, ns) in (("attn_kernel", 128, 72), ("proj_kernel", 168, 64)):
    e(".p2align 6")
    e(f".amdhsa_kernel {k}")
    e(f"  .amdhsa_next_free_vgpr {nv}")
    e(f"  .amdhsa_next_free_sgpr {ns}")
    e(f"  .amdhsa_accum_offset {nv}")
    e("  .amdhsa_group_segment_fixed_size 0")
    e("  .amdhsa_kernarg_size 96")
    e("  .amdhsa_user_sgpr_count 2")
    e("  .amdhsa_user_sgpr_kernarg_segment_ptr 1")
    e("  .amdhsa_system_sgpr_workgroup_id_x 1")
    e(".end_amdhsa_kernel")

dst = sys.argv[1] if len(sys.argv) > 1 else f"cdna_kernels/{NAME}.s"
open(dst, "w").write("\n".join(out) + "\n")
```

```python
import sys, struct

NAME = "recurrent_scan__mha_block_cached__geglu_ffn__decode"
out = []
def e(s=""):
    out.append(s)
def f32(x):
    return "0x%08x" % struct.unpack("<I", struct.pack("<f", x))[0]

LOG2E = f32(1.4426950408889634)
SCALE = f32(128 ** -0.5)

import os
NT = os.environ.get("NT", "nt")
NTS = (" " + NT) if NT else ""
WNT = os.environ.get("WNT", "")
WTS = (" " + WNT) if WNT else ""

PART_STRIDE = 1024
ACC_OFF = 256 * 1024
WS_SIZE = 0x40000000
GU_WS = ACC_OFF + 8192

def srd(d, p, size):
    e(f"  s_mov_b32 s{d}, s{p}")
    e(f"  s_and_b32 s{d+1}, s{p+1}, 0xffff")
    e(f"  s_mov_b32 s{d+2}, {size}")
    e(f"  s_mov_b32 s{d+3}, 0x00020000")

def row_allreduce(op, v):
    for sh in (8, 4, 2, 1):
        e("  s_nop 1")
        e(f"  {op}_dpp v{v}, v{v}, v{v} row_ror:{sh} row_mask:0xf bank_mask:0xf")

def wave_from_rows(op, v, s0):
    e("  s_nop 1")
    for k in range(4):
        e(f"  v_readlane_b32 s{s0+k}, v{v}, {16*k}")
    e("  s_nop 1")
    e(f"  v_mov_b32 v{v}, s{s0}")
    for k in range(1, 4):
        e(f"  {op} v{v}, s{s0+k}, v{v}")

def bf16r(dst, src):
    e(f"  v_cvt_pk_bf16_f32 v{dst}, v{src}, v{src}")
    e(f"  v_lshlrev_b32 v{dst}, 16, v{dst}")

def layernorm(xr, xf, t, s0):
    for j in range(4):
        e(f"  v_lshlrev_b32 v{xf+2*j}, 16, v{xr+j}")
        e(f"  v_and_b32 v{xf+2*j+1}, 0xffff0000, v{xr+j}")
    e(f"  v_add_f32 v{t}, v{xf}, v{xf+1}")
    for j in range(2, 8):
        e(f"  v_add_f32 v{t}, v{t}, v{xf+j}")
    row_allreduce("v_add_f32", t)
    wave_from_rows("v_add_f32", t, s0)
    e(f"  v_mul_f32 v{t}, {f32(1.0/512)}, v{t}")
    e(f"  v_sub_f32 v{t+2}, v{xf}, v{t}")
    e(f"  v_mul_f32 v{t+1}, v{t+2}, v{t+2}")
    for j in range(1, 8):
        e(f"  v_sub_f32 v{t+2}, v{xf+j}, v{t}")
        e(f"  v_fmac_f32 v{t+1}, v{t+2}, v{t+2}")
    row_allreduce("v_add_f32", t+1)
    wave_from_rows("v_add_f32", t+1, s0)
    e(f"  v_mul_f32 v{t+1}, {f32(1.0/512)}, v{t+1}")
    bf16r(t, t)
    bf16r(t+1, t+1)
    e(f"  v_add_f32 v{t+1}, {f32(1e-5)}, v{t+1}")
    bf16r(t+1, t+1)
    e(f"  v_sqrt_f32 v{t+1}, v{t+1}")
    e("  s_nop 0")
    bf16r(t+1, t+1)
    e(f"  v_rcp_f32 v{t+2}, v{t+1}")
    e("  s_nop 0")
    for j in range(8):
        e(f"  v_sub_f32 v{t+3}, v{xf+j}, v{t}")
        bf16r(t+3, t+3)
        e(f"  v_mul_f32 v{t+4}, v{t+3}, v{t+2}")
        e(f"  v_fma_f32 v{t+5}, -v{t+4}, v{t+1}, v{t+3}")
        e(f"  v_fma_f32 v{t+4}, v{t+5}, v{t+2}, v{t+4}")
        bf16r(xf+j, t+4)

def gelu_mul(g, u, d):
    e(f"  v_mul_f32 v{d}, v{g}, v{g}")
    e(f"  v_mul_f32 v{d}, v{d}, v{g}")
    e(f"  v_mul_f32 v{d}, {f32(0.044715)}, v{d}")
    e(f"  v_add_f32 v{d}, v{d}, v{g}")
    e(f"  v_mul_f32 v{d}, {f32(2*0.7978845608028654*1.4426950408889634)}, v{d}")
    e(f"  v_exp_f32 v{d}, v{d}")
    e("  s_nop 0")
    e(f"  v_add_f32 v{d}, 1.0, v{d}")
    e(f"  v_rcp_f32 v{d}, v{d}")
    e("  s_nop 0")
    e(f"  v_sub_f32 v{d}, 1.0, v{d}")
    e(f"  v_mul_f32 v{d}, v{d}, v{g}")
    bf16r(d, d)
    e(f"  v_mul_f32 v{d}, v{d}, v{u}")
    bf16r(d, d)

NWG_A = 256
e(f"; @launch kernel=attn_kernel grid=({NWG_A},1,1) block=(1024,1,1) lds=77824")
e("; @launch kernel=proj_kernel grid=(171,1,1) block=(256,1,1) lds=40960")
e('.amdgcn_target "amdgcn-amd-amdhsa--gfx950"')
e(".text")

QRED = 0
Q2 = 32768
ML = 36864
XN = 37888
FRED = 43008

K0, V0, WQ0 = 32, 64, 96
Q, ACC, M, L, S = 4, 8, 16, 17, 18
PLO, PHI, T = 96, 104, 112
VO0, VO1 = 2, 3
NBLK = 8

e(".globl attn_kernel\n.p2align 8\n.type attn_kernel,@function\nattn_kernel:")
e(f"  s_cmp_ge_u32 s2, {NWG_A}")
e("  s_cbranch_scc1 A_end")
e("  s_load_dwordx8 s[4:11], s[0:1], 0")
e("  s_load_dwordx2 s[12:13], s[0:1], 88")
e("  s_load_dwordx4 s[52:55], s[0:1], 48")
e("  v_and_b32 v1, 63, v0")
e("  v_lshrrev_b32 v26, 6, v0")
e("  s_lshr_b32 s37, s2, 2")
e("  s_lshr_b32 s38, s37, 5")
e("  s_and_b32 s39, s37, 31")
if int(os.environ.get("ILV", "1")) == 2:
    e("  s_lshl_b32 s36, s37, 22")
    e("  s_and_b32 s40, s2, 3")
    e("  s_lshl_b32 s40, s40, 17")
    e("  s_add_u32 s36, s36, s40")
else:
    e("  s_lshl_b32 s36, s2, 20")
e("  s_lshl_b32 s40, s38, 10")
e("  s_lshl_b32 s41, s39, 8")
e("  v_lshlrev_b32 v27, 4, v1")
ILV = int(os.environ.get("ILV", "1"))
STEP = {0: 8192, 1: 131072, 2: 524288}[ILV]
e(f"  v_lshl_add_u32 v{VO0}, v26, {13 if ILV else 16}, v27")
e(f"  v_add_u32 v{VO1}, 4096, v{VO0}")
e("  v_lshrrev_b32 v28, 4, v0")
e("  v_and_b32 v29, 15, v0")
e("  v_lshlrev_b32 v29, 4, v29")
e("  v_lshl_add_u32 v28, v28, 13, v29")
e("  s_waitcnt lgkmcnt(0)")
srd(16, 6, 0x10000000)
srd(20, 8, 0x10000000)
srd(24, 10, 0x400000)
srd(28, 4, 2048)
srd(32, 12, WS_SIZE)
e("  s_cmp_lt_u32 s2, 176")
e("  s_cselect_b32 s51, %d, 0" % (0 if os.environ.get("NOFFN") else 1409024))
e("  s_mov_b32 s56, s52\n  s_and_b32 s57, s53, 0xffff\n  s_mov_b32 s58, s51\n  s_mov_b32 s59, 0x00020000")
e("  s_mov_b32 s60, s54\n  s_and_b32 s61, s55, 0xffff\n  s_mov_b32 s62, s51\n  s_mov_b32 s63, 0x00020000")
e("  s_and_b32 s65, s2, 7")
e("  s_lshr_b32 s66, s2, 3")
e(f"  s_mul_i32 s49, s65, {64*2752}")
e("  s_lshl_b32 s50, s66, 7")
e("  s_add_u32 s49, s49, s50")
e("  v_and_b32 v29, 511, v0")
e("  v_lshrrev_b32 v29, 3, v29")
e("  s_movk_i32 s48, 2752")
e("  v_mul_lo_u32 v29, v29, s48")
e("  v_and_b32 v30, 7, v0")
e("  v_lshl_add_u32 v29, v30, 4, v29")
e("  v_readfirstlane_b32 s64, v26")

def kv_loads(base, rsrc, lo=0, hi=8):
    for i in range(lo, hi):
        vo = VO0 if i < 4 else VO1
        e(f"  buffer_load_dwordx4 v[{base+4*i}:{base+4*i+3}], v{vo}, s[{rsrc}:{rsrc+3}], s36 offen offset:{1024*(i%4)}{NTS}")

e("  buffer_load_dwordx4 v[16:19], v27, s[28:31], 0 offen")
e("  buffer_load_dwordx4 v[4:7], v27, s[28:31], 0 offen offset:1024")
for i in range(8):
    e(f"  buffer_load_dwordx4 v[{WQ0+4*i}:{WQ0+4*i+3}], v28, s[24:27], s41 offen{WTS}")
    if i < 7:
        e("  s_add_u32 s41, s41, 0x80000")
e("  s_cmp_ge_u32 s64, 8")
e("  s_cbranch_scc1 A_ldu")
e(f"  buffer_load_dwordx4 v[92:95], v29, s[56:59], s49 offen{WTS}")
e("  s_branch A_ldd")
e("A_ldu:")
e(f"  buffer_load_dwordx4 v[92:95], v29, s[60:63], s49 offen{WTS}")
e("A_ldd:")
kv_loads(K0, 16)
e(f"  s_add_u32 s36, s36, {STEP}")
kv_loads(V0, 16, 0, 7)
e("  s_cmp_lg_u32 s2, 0")
e("  s_cbranch_scc1 A_nozero")
e("  v_cmp_gt_u32 vcc, 512, v0")
e("  s_and_saveexec_b64 s[42:43], vcc")
e("  s_cbranch_execz A_zrest")
e("  v_mov_b32 v20, 0\n  v_mov_b32 v21, 0\n  v_mov_b32 v22, 0\n  v_mov_b32 v23, 0")
e("  v_lshlrev_b32 v24, 4, v0")
e(f"  v_add_u32 v24, {ACC_OFF}, v24")
e("  buffer_store_dwordx4 v[20:23], v24, s[32:35], 0 offen")
e("A_zrest:")
e("  s_mov_b64 exec, s[42:43]")
e("  s_nop 1")
e("A_nozero:")
e("  s_waitcnt vmcnt(24)")
layernorm(16, 8, 20, 44)
e("  v_lshlrev_b32 v30, 5, v1")
e(f"  ds_write_b128 v30, v[8:11] offset:{XN}")
e(f"  ds_write_b128 v30, v[12:15] offset:{XN+16}")
layernorm(4, 8, 20, 44)
e(f"  ds_write_b128 v30, v[8:11] offset:{XN+2048}")
e(f"  ds_write_b128 v30, v[12:15] offset:{XN+2048+16}")
e("  v_lshrrev_b32 v31, 4, v0")
e("  v_lshlrev_b32 v31, 2, v31")
e("  s_lshl_b32 s40, s38, 11")
e("  v_add_u32 v31, s40, v31")
e("  v_and_b32 v30, 511, v0")
e("  v_lshrrev_b32 v30, 3, v30")
e("  s_lshl_b32 s40, s65, 8")
e("  v_lshl_add_u32 v30, v30, 2, s40")
e("  s_waitcnt lgkmcnt(0)")
for i in range(8):
    e(f"  ds_read_b32 v{16+i}, v31 offset:{XN+256*i}")
e(f"  ds_read_b32 v27, v30 offset:{XN}")
e(f"  ds_read_b32 v28, v30 offset:{XN+2048}")
for j in range(8):
    e(f"  v_mov_b32 v{8+j}, 0")
e("  s_waitcnt vmcnt(16) lgkmcnt(0)")
for i in range(8):
    for j in range(4):
        e(f"  v_lshlrev_b32 v24, 16, v{WQ0+4*i+j}")
        e(f"  v_and_b32 v25, 0xffff0000, v{WQ0+4*i+j}")
        e(f"  v_fmac_f32 v{8+2*j}, v24, v{16+i}")
        e(f"  v_fmac_f32 v{8+2*j+1}, v25, v{16+i}")
e("  v_lshlrev_b32 v30, 5, v0")
e(f"  ds_write_b128 v30, v[8:11] offset:{QRED}")
e(f"  ds_write_b128 v30, v[12:15] offset:{QRED+16}")
e("  s_waitcnt vmcnt(15)")
for j in range(4):
    e(f"  v_lshlrev_b32 v{112+2*j}, 16, v{92+j}")
    e(f"  v_and_b32 v{113+2*j}, 0xffff0000, v{92+j}")
for j in range(8):
    e(f"  v_mul_f32 v{96+j}, v{112+j}, v27")
    e(f"  v_mul_f32 v{104+j}, v{112+j}, v28")
kv_loads(V0, 16, 7, 8)
e(f"  s_sub_u32 s36, s36, {STEP}")
for j in range(16):
    e(f"  v_add_f32_dpp v{96+j}, v{96+j}, v{96+j} row_ror:8 row_mask:0xf bank_mask:0xf")
e("  v_lshrrev_b32 v24, 4, v0")
e("  v_lshlrev_b32 v24, 9, v24")
e("  v_and_b32 v25, 7, v0")
e("  v_lshl_add_u32 v24, v25, 5, v24")
e(f"  ds_write_b128 v24, v[96:99] offset:{FRED}")
e(f"  ds_write_b128 v24, v[100:103] offset:{FRED+16}")
e(f"  ds_write_b128 v24, v[104:107] offset:{FRED+256}")
e(f"  ds_write_b128 v24, v[108:111] offset:{FRED+256+16}")
e("  v_and_b32 v24, 127, v0")
e("  v_lshrrev_b32 v25, 7, v0")
e("  v_lshlrev_b32 v24, 2, v24")
e("  v_lshl_add_u32 v31, v25, 12, v24")
e("  s_waitcnt lgkmcnt(0)")
e("  s_barrier")
for r in range(8):
    e(f"  ds_read_b32 v{16+r}, v31 offset:{QRED+512*r}")
e("  v_lshlrev_b32 v29, 2, v0")
e("  s_waitcnt lgkmcnt(0)")
for r in range(1, 8):
    e(f"  v_add_f32 v16, v16, v{16+r}")
e(f"  ds_write_b32 v29, v16 offset:{Q2}")
e("  s_cmp_ge_u32 s64, 4")
e("  s_cbranch_scc1 A_nf1")
e("  s_cmp_ge_u32 s2, 176")
e("  s_cbranch_scc1 A_nf1")
e("  v_lshrrev_b32 v24, 7, v0")
e("  v_and_b32 v25, 127, v0")
e("  v_lshlrev_b32 v24, 14, v24")
e("  v_lshl_add_u32 v24, v25, 2, v24")
for p in range(32):
    e(f"  ds_read_b32 v{96+p}, v24 offset:{FRED+512*p}")
e("  s_lshl_b32 s48, s65, 2")
e("  s_add_u32 s48, s48, s64")
e("  s_mul_i32 s48, s48, 5632")
e("  s_lshl_b32 s49, s66, 8")
e("  s_add_u32 s48, s48, s49")
e(f"  s_add_u32 s48, s48, {GU_WS}")
e("  v_lshlrev_b32 v25, 2, v1")
e("  s_waitcnt lgkmcnt(0)")
for p in range(1, 32):
    e(f"  v_add_f32 v96, v96, v{96+p}")
e("  buffer_store_dword v96, v25, s[32:35], s48 offen")
e("A_nf1:")
e("  v_and_b32 v24, 15, v1")
e("  v_lshlrev_b32 v24, 5, v24")
e("  s_waitcnt lgkmcnt(0)")
e("  s_barrier")
for jj in range(8):
    e(f"  ds_read_b128 v[{WQ0+8*(jj%4)}:{WQ0+8*(jj%4)+3}], v24 offset:{Q2+512*jj}")
    e(f"  ds_read_b128 v[{WQ0+8*(jj%4)+4}:{WQ0+8*(jj%4)+7}], v24 offset:{Q2+512*jj+16}")
    if jj % 4 == 3:
        e("  s_waitcnt lgkmcnt(0)")
        for k in range(4):
            for j in range(8):
                if jj == 3 and k == 0:
                    e(f"  v_mov_b32 v{8+j}, v{WQ0+j}")
                else:
                    e(f"  v_add_f32 v{8+j}, v{8+j}, v{WQ0+8*k+j}")
for j in range(4):
    e(f"  v_cvt_pk_bf16_f32 v{Q+j}, v{8+2*j}, v{8+2*j+1}")
for j in range(8):
    e(f"  v_mov_b32 v{ACC+j}, 0")
e(f"  v_mov_b32 v{M}, 0xff800000")
e(f"  v_mov_b32 v{L}, 0")
e(f"  s_mov_b32 s44, {SCALE}")
e(f"  s_mov_b32 s45, {LOG2E}")
e("  s_mov_b32 s46, 0")

PURE = int(os.environ.get("PURE", "0"))
def block(last):
    if PURE:
        e("  s_waitcnt vmcnt(8)")
        e(f"  v_add_f32 v{ACC}, v{K0}, v{ACC}")
        if not last:
            kv_loads(K0, 16)
        e("  s_waitcnt vmcnt(0)" if last else "  s_waitcnt vmcnt(8)")
        e(f"  v_add_f32 v{ACC}, v{V0}, v{ACC}")
        if not last:
            kv_loads(V0, 20)
            e(f"  s_add_u32 s36, s36, {STEP}")
        return
    e("  s_waitcnt vmcnt(8)")
    for t in range(4):
        for i in range(8):
            c = "0" if t == 0 else f"v{S+i}"
            e(f"  v_dot2_f32_bf16 v{S+i}, v{K0+4*i+t}, v{Q+t}, {c}")
    if not last:
        kv_loads(K0, 16)
    for sh in (8, 4, 2, 1):
        for i in range(8):
            e(f"  v_add_f32_dpp v{S+i}, v{S+i}, v{S+i} row_ror:{sh} row_mask:0xf bank_mask:0xf")
    for rnd in range(2):
        for p in range(4):
            e(f"  v_cvt_pk_bf16_f32 v{T+p}, v{S+2*p}, v{S+2*p+1}")
        for p in range(4):
            e(f"  v_lshlrev_b32 v{S+2*p}, 16, v{T+p}")
            e(f"  v_and_b32 v{S+2*p+1}, 0xffff0000, v{T+p}")
        if rnd == 0:
            for i in range(8):
                e(f"  v_mul_f32 v{S+i}, s44, v{S+i}")
    MN, A = T+4, T+5
    e(f"  v_max3_f32 v{MN}, v{M}, v{S}, v{S+1}")
    for p in range(1, 4):
        e(f"  v_max3_f32 v{MN}, v{MN}, v{S+2*p}, v{S+2*p+1}")
    e(f"  v_sub_f32 v{A}, v{M}, v{MN}")
    for i in range(8):
        e(f"  v_sub_f32 v{S+i}, v{S+i}, v{MN}")
    e(f"  v_mul_f32 v{A}, s45, v{A}")
    for i in range(8):
        e(f"  v_mul_f32 v{S+i}, s45, v{S+i}")
    e(f"  v_exp_f32 v{A}, v{A}")
    for i in range(8):
        e(f"  v_exp_f32 v{S+i}, v{S+i}")
    e(f"  v_mov_b32 v{M}, v{MN}")
    for j in range(8):
        e(f"  v_mul_f32 v{ACC+j}, v{ACC+j}, v{A}")
    for p in range(4):
        e(f"  v_add_f32 v{T+p}, v{S+2*p}, v{S+2*p+1}")
    e(f"  v_add_f32 v{T}, v{T}, v{T+1}")
    e(f"  v_add_f32 v{T+2}, v{T+2}, v{T+3}")
    e(f"  v_add_f32 v{T}, v{T}, v{T+2}")
    e(f"  v_fma_f32 v{L}, v{L}, v{A}, v{T}")
    for i in range(8):
        e(f"  v_cvt_pk_bf16_f32 v{PLO+i}, v{S+i}, 0")
        e(f"  v_cvt_pk_bf16_f32 v{PHI+i}, 0, v{S+i}")
    e("  s_waitcnt vmcnt(0)" if last else "  s_waitcnt vmcnt(8)")
    for i in range(8):
        for t in range(4):
            e(f"  v_dot2_f32_bf16 v{ACC+2*t}, v{V0+4*i+t}, v{PLO+i}, v{ACC+2*t}")
            e(f"  v_dot2_f32_bf16 v{ACC+2*t+1}, v{V0+4*i+t}, v{PHI+i}, v{ACC+2*t+1}")
    if not last:
        kv_loads(V0, 20)
        e(f"  s_add_u32 s36, s36, {STEP}")

SC = 96
TT = 26
def issue(n):
    buf = K0 if n % 2 == 0 else V0
    r = 16 if n < 8 else 20
    e(f"  s_add_u32 s46, s36, {STEP*(n%8)}")
    for i in range(8):
        vo = VO0 if i < 4 else VO1
        e(f"  buffer_load_dwordx4 v[{buf+4*i}:{buf+4*i+3}], v{vo}, s[{r}:{r+3}], s46 offen offset:{1024*(i%4)}{NTS}")
for n in range(16):
    buf = K0 if n % 2 == 0 else V0
    e("  s_waitcnt vmcnt(0)" if n == 15 else "  s_waitcnt vmcnt(8)")
    if n < 8:
        for t in range(4):
            for i in range(8):
                c = "0" if t == 0 else f"v{S+i}"
                e(f"  v_dot2_f32_bf16 v{S+i}, v{buf+4*i+t}, v{Q+t}, {c}")
        issue(n + 2)
        for sh in (8, 4, 2, 1):
            for i in range(8):
                e(f"  v_add_f32_dpp v{S+i}, v{S+i}, v{S+i} row_ror:{sh} row_mask:0xf bank_mask:0xf")
        for p in range(4):
            e(f"  v_cvt_pk_bf16_f32 v{TT+p}, v{S+2*p}, v{S+2*p+1}")
        for p in range(4):
            e(f"  v_lshlrev_b32 v{S+2*p}, 16, v{TT+p}")
            e(f"  v_and_b32 v{S+2*p+1}, 0xffff0000, v{TT+p}")
        for i in range(8):
            e(f"  v_mul_f32 v{S+i}, s44, v{S+i}")
        for p in range(4):
            e(f"  v_cvt_pk_bf16_f32 v{SC+4*n+p}, v{S+2*p}, v{S+2*p+1}")
            e(f"  v_max3_f32 v{M}, v{M}, v{S+2*p}, v{S+2*p+1}")
        if n == 7:
            bf16r(M, M)
    else:
        k = n - 8
        for p in range(4):
            e(f"  v_lshlrev_b32 v{S+2*p}, 16, v{SC+4*k+p}")
            e(f"  v_and_b32 v{S+2*p+1}, 0xffff0000, v{SC+4*k+p}")
        for i in range(8):
            e(f"  v_sub_f32 v{S+i}, v{S+i}, v{M}")
        for i in range(8):
            e(f"  v_mul_f32 v{S+i}, s45, v{S+i}")
        for i in range(8):
            e(f"  v_exp_f32 v{S+i}, v{S+i}")
        for p in range(4):
            e(f"  v_add_f32 v{TT+p}, v{S+2*p}, v{S+2*p+1}")
        e(f"  v_add_f32 v{TT}, v{TT}, v{TT+1}")
        e(f"  v_add_f32 v{TT+2}, v{TT+2}, v{TT+3}")
        e(f"  v_add_f32 v{TT}, v{TT}, v{TT+2}")
        e(f"  v_add_f32 v{L}, v{L}, v{TT}")
        for i in range(8):
            lo, hi = TT + 2*(i % 2), TT + 2*(i % 2) + 1
            e(f"  v_cvt_pk_bf16_f32 v{lo}, v{S+i}, 0")
            e(f"  v_cvt_pk_bf16_f32 v{hi}, 0, v{S+i}")
            for t in range(4):
                e(f"  v_dot2_f32_bf16 v{ACC+2*t}, v{buf+4*i+t}, v{lo}, v{ACC+2*t}")
                e(f"  v_dot2_f32_bf16 v{ACC+2*t+1}, v{buf+4*i+t}, v{hi}, v{ACC+2*t+1}")
        if n + 2 < 16:
            issue(n + 2)
e("  v_lshrrev_b32 v26, 6, v0")
e("  v_and_b32 v24, 127, v0")
e("  v_lshrrev_b32 v25, 7, v0")
e("  v_lshlrev_b32 v24, 2, v24")
e("  v_lshl_add_u32 v31, v25, 12, v24")
e("A_epi:")
e("  s_nop 3")
e(f"  v_mov_b32 v20, v{M}")
wave_from_rows("v_max_f32", 20, 48)
e(f"  v_sub_f32 v21, v{M}, v20")
e("  v_mul_f32 v21, s45, v21")
e("  v_exp_f32 v21, v21")
e("  s_nop 0")
e(f"  v_mul_f32 v{L}, v{L}, v21")
for j in range(8):
    e(f"  v_mul_f32 v{ACC+j}, v{ACC+j}, v21")
wave_from_rows("v_add_f32", L, 48)
e("  v_lshlrev_b32 v30, 5, v0")
e(f"  ds_write_b128 v30, v[{ACC}:{ACC+3}] offset:{QRED}")
e(f"  ds_write_b128 v30, v[{ACC+4}:{ACC+7}] offset:{QRED+16}")
e("  v_lshlrev_b32 v29, 2, v26")
e(f"  ds_write_b32 v29, v20 offset:{ML}")
e(f"  ds_write_b32 v29, v{L} offset:{ML+64}")
e("  v_mov_b32 v24, 0")
e("  v_lshrrev_b32 v25, 7, v0")
e("  v_lshlrev_b32 v28, 3, v25")
e("  s_waitcnt lgkmcnt(0)")
e("  s_barrier")
for k in range(4):
    e(f"  ds_read_b128 v[{32+4*k}:{35+4*k}], v24 offset:{ML+16*k}")
e(f"  ds_read_b64 v[48:49], v28 offset:{ML}")
for r in range(8):
    e(f"  ds_read_b32 v{50+r}, v31 offset:{QRED+512*r}")
e("  s_waitcnt lgkmcnt(0)")
e("  v_max3_f32 v60, v32, v33, v34")
for k in range(35, 47, 2):
    e(f"  v_max3_f32 v60, v60, v{k}, v{k+1}")
e("  v_max_f32 v60, v60, v47")
e("  v_sub_f32 v48, v48, v60\n  v_sub_f32 v49, v49, v60")
e("  v_mul_f32 v48, s45, v48\n  v_mul_f32 v49, s45, v49")
e("  v_exp_f32 v48, v48\n  v_exp_f32 v49, v49")
e("  v_add_f32 v50, v50, v51\n  v_add_f32 v52, v52, v53\n  v_add_f32 v54, v54, v55\n  v_add_f32 v56, v56, v57")
e("  v_add_f32 v50, v50, v52\n  v_add_f32 v54, v54, v56")
e("  v_mul_f32 v50, v50, v48")
e("  v_fmac_f32 v50, v54, v49")
e("  v_lshlrev_b32 v29, 2, v0")
e(f"  ds_write_b32 v29, v50 offset:{Q2}")
e("  s_waitcnt lgkmcnt(0)")
e("  s_barrier")
e("  v_cmp_gt_u32 vcc, 128, v0")
e("  s_and_saveexec_b64 s[42:43], vcc")
e("  s_cbranch_execz A_end")
for r in range(8):
    e(f"  ds_read_b32 v{50+r}, v29 offset:{Q2+512*r}")
for k in range(4):
    e(f"  ds_read_b128 v[{64+4*k}:{67+4*k}], v24 offset:{ML+64+16*k}")
e("  s_waitcnt lgkmcnt(0)")
for r in range(1, 8):
    e(f"  v_add_f32 v50, v50, v{50+r}")
e("  v_mov_b32 v61, 0")
for k in range(16):
    e(f"  v_sub_f32 v{32+k}, v{32+k}, v60")
    e(f"  v_mul_f32 v{32+k}, s45, v{32+k}")
    e(f"  v_exp_f32 v{32+k}, v{32+k}")
    e("  s_nop 0")
    e(f"  v_fmac_f32 v61, v{32+k}, v{64+k}")
e("  s_lshl_b32 s47, s2, 10")
e("  buffer_store_dword v50, v29, s[32:35], s47 offen")
e("  v_cmp_eq_u32 vcc, 0, v0")
e("  s_and_saveexec_b64 s[42:43], vcc")
e("  s_cbranch_execz A_end")
e("  buffer_store_dwordx2 v[60:61], v24, s[32:35], s47 offen offset:512")
e("A_end:")
e("  s_endpgm")

e(".globl proj_kernel\n.p2align 8\n.type proj_kernel,@function\nproj_kernel:")
e("  s_cmp_ge_u32 s2, 171")
e("  s_cbranch_scc1 B_end")
e("  s_load_dwordx2 s[4:5], s[0:1], 0")
e("  s_load_dwordx2 s[6:7], s[0:1], 32")
e("  s_load_dwordx4 s[8:11], s[0:1], 48")
e("  s_load_dwordx2 s[12:13], s[0:1], 64")
e("  s_load_dwordx2 s[14:15], s[0:1], 88")
e("  v_and_b32 v1, 63, v0")
e("  v_lshrrev_b32 v2, 6, v0")
e(f"  s_mov_b32 s45, {LOG2E}")
e("  s_waitcnt lgkmcnt(0)")
srd(20, 14, WS_SIZE)
e("  s_cmp_ge_u32 s2, 128")
e("  s_cbranch_scc1 B_ffn")
O_OFF, RED = 0, 2048
srd(16, 6, 0x400000)
e("  s_lshr_b32 s36, s2, 3")
e("  s_and_b32 s37, s2, 7")
e("  s_lshl_b32 s38, s36, 18")
e("  s_lshl_b32 s39, s37, 7")
e("  s_add_u32 s38, s38, s39")
e("  s_lshl_b32 s40, s36, 13")
e("  v_lshrrev_b32 v3, 1, v2")
e("  v_and_b32 v4, 1, v2")
e("  v_lshlrev_b32 v5, 17, v3")
e("  v_lshl_add_u32 v5, v4, 12, v5")
e("  v_lshl_add_u32 v6, v1, 3, v5")
for s in range(4):
    e(f"  buffer_load_dwordx2 v[{64+2*s}:{65+2*s}], v6, s[20:23], s40 offen offset:{1024*s}")
    e(f"  buffer_load_dwordx2 v[{72+2*s}:{73+2*s}], v5, s[20:23], s40 offen offset:{1024*s+512}")
e("  v_lshrrev_b32 v7, 3, v0")
e("  v_and_b32 v8, 7, v0")
e("  v_lshlrev_b32 v8, 4, v8")
e("  v_lshl_add_u32 v9, v7, 10, v8")
for i in range(8):
    e(f"  buffer_load_dwordx4 v[{32+4*i}:{35+4*i}], v9, s[16:19], s38 offen{WTS}")
    if i < 7:
        e("  s_add_u32 s38, s38, 0x8000")
e("  s_waitcnt vmcnt(8)")
e("  v_max3_f32 v10, v72, v74, v76")
e("  v_max_f32 v10, v10, v78")
for s in range(4):
    e(f"  v_sub_f32 v{72+2*s}, v{72+2*s}, v10")
    e(f"  v_mul_f32 v{72+2*s}, s45, v{72+2*s}")
    e(f"  v_exp_f32 v{72+2*s}, v{72+2*s}")
e("  s_nop 0")
e("  v_mul_f32 v11, v72, v73\n  v_mul_f32 v12, v72, v64\n  v_mul_f32 v13, v72, v65")
for s in range(1, 4):
    e(f"  v_fmac_f32 v11, v{72+2*s}, v{73+2*s}")
    e(f"  v_fmac_f32 v12, v{72+2*s}, v{64+2*s}")
    e(f"  v_fmac_f32 v13, v{72+2*s}, v{65+2*s}")
e("  v_rcp_f32 v14, v11")
e("  s_nop 0")
for r in (12, 13):
    e(f"  v_mul_f32 v15, v{r}, v14")
    e(f"  v_fma_f32 v16, -v15, v11, v{r}")
    e("  v_fma_f32 v15, v16, v14, v15")
    bf16r(r, 15)
e("  v_lshlrev_b32 v15, 10, v4")
e("  v_lshl_add_u32 v15, v1, 4, v15")
e("  v_lshl_add_u32 v15, v3, 2, v15")
e(f"  ds_write_b32 v15, v12 offset:{O_OFF}")
e(f"  ds_write_b32 v15, v13 offset:{O_OFF+8}")
e("  v_lshlrev_b32 v16, 3, v7")
for j in range(16):
    e(f"  v_mov_b32 v{96+j}, 0")
e("  s_waitcnt lgkmcnt(0)")
e("  s_barrier")
for i in range(8):
    e(f"  ds_read_b64 v[{64+2*i}:{65+2*i}], v16 offset:{O_OFF+256*i}")
e("  s_waitcnt vmcnt(0) lgkmcnt(0)")
for i in range(8):
    for j in range(4):
        e(f"  v_lshlrev_b32 v18, 16, v{32+4*i+j}")
        e(f"  v_and_b32 v19, 0xffff0000, v{32+4*i+j}")
        e(f"  v_fmac_f32 v{96+2*j}, v18, v{64+2*i}")
        e(f"  v_fmac_f32 v{97+2*j}, v19, v{64+2*i}")
        e(f"  v_fmac_f32 v{104+2*j}, v18, v{65+2*i}")
        e(f"  v_fmac_f32 v{105+2*j}, v19, v{65+2*i}")
e("  s_nop 1")
for j in range(16):
    e(f"  v_add_f32_dpp v{96+j}, v{96+j}, v{96+j} row_ror:8 row_mask:0xf bank_mask:0xf")
e("  v_lshrrev_b32 v17, 4, v0")
e("  v_lshlrev_b32 v17, 9, v17")
e("  v_and_b32 v18, 7, v0")
e("  v_lshl_add_u32 v17, v18, 5, v17")
e(f"  ds_write_b128 v17, v[96:99] offset:{RED}")
e(f"  ds_write_b128 v17, v[100:103] offset:{RED+16}")
e(f"  ds_write_b128 v17, v[104:107] offset:{RED+256}")
e(f"  ds_write_b128 v17, v[108:111] offset:{RED+256+16}")
e("  v_lshlrev_b32 v18, 2, v0")
e("  s_waitcnt lgkmcnt(0)")
e("  s_barrier")
e("  v_cmp_gt_u32 vcc, 128, v0")
e("  s_and_saveexec_b64 s[42:43], vcc")
e("  s_cbranch_execz B_w1")
for p in range(16):
    e(f"  ds_read_b32 v{32+p}, v18 offset:{RED+512*p}")
e("  v_lshlrev_b32 v19, 11, v2")
e("  v_lshl_add_u32 v19, v1, 2, v19")
e("  s_lshl_b32 s39, s37, 8")
e(f"  s_add_u32 s39, s39, {ACC_OFF}")
e("  s_waitcnt lgkmcnt(0)")
for p in range(1, 16):
    e(f"  v_add_f32 v32, v32, v{32+p}")
e("  buffer_atomic_add_f32 v32, v19, s[20:23], s39 offen sc0")
e("  s_waitcnt vmcnt(0)")
e("B_w1:")
e("  s_mov_b64 exec, s[42:43]")
e("  s_branch B_arrive")
e("B_ffn:")
RED2 = 16384
srd(28, 12, 1409024)
e("  s_sub_u32 s36, s2, 128")
e("  s_lshl_b32 s39, s36, 15")
H_OFF = 0
e("  s_lshl_b32 s38, s36, 7")
e(f"  s_add_u32 s38, s38, {GU_WS}")
e("  v_lshrrev_b32 v3, 5, v1")
e("  v_and_b32 v4, 31, v1")
e("  s_movk_i32 s40, 5632")
e("  v_mul_lo_u32 v5, v3, s40")
e("  v_lshl_add_u32 v5, v4, 2, v5")
e("  v_add_u32 v8, 11264, v5")
e("  v_readfirstlane_b32 s41, v2")
e("  s_cmp_lg_u32 s41, 0")
e("  s_cbranch_scc1 B_d0")
for rg in range(8):
    e(f"  buffer_load_dword v{32+rg}, v5, s[20:23], s38 offen")
    e(f"  buffer_load_dword v{40+rg}, v8, s[20:23], s38 offen")
    if rg < 7:
        e(f"  s_add_u32 s38, s38, {4*5632}")
e("B_d0:")
e("  v_lshlrev_b32 v7, 13, v2")
e("  v_lshl_add_u32 v7, v1, 4, v7")
e("  v_add_u32 v6, 4096, v7")
for i in range(8):
    e(f"  buffer_load_dwordx4 v[{96+4*i}:{99+4*i}], v{7 if i < 4 else 6}, s[28:31], s39 offen offset:{1024*(i%4)}{WTS}")
e("  s_cmp_lg_u32 s41, 0")
e("  s_cbranch_scc1 B_d1")
e("  s_waitcnt vmcnt(8)")
for rg in range(1, 8):
    e(f"  v_add_f32 v32, v32, v{32+rg}")
    e(f"  v_add_f32 v40, v40, v{40+rg}")
bf16r(32, 32)
bf16r(40, 40)
gelu_mul(32, 40, 34)
e("  v_lshlrev_b32 v4, 3, v4")
e("  v_lshl_add_u32 v4, v3, 2, v4")
e(f"  ds_write_b32 v4, v34 offset:{H_OFF}")
e("  s_waitcnt lgkmcnt(0)")
e("B_d1:")
for j in range(16):
    e(f"  v_mov_b32 v{128+j}, 0")
e("  v_lshlrev_b32 v30, 2, v0")
e("  v_lshlrev_b32 v27, 6, v2")
e("  s_barrier")
for i in range(8):
    e(f"  ds_read_b64 v[{8+2*i}:{9+2*i}], v27 offset:{H_OFF+8*i}")
e("  s_waitcnt lgkmcnt(0)")
for i in range(8):
    e(f"  s_waitcnt vmcnt({7-i})")
    for j in range(4):
        e(f"  v_lshlrev_b32 v28, 16, v{96+4*i+j}")
        e(f"  v_and_b32 v29, 0xffff0000, v{96+4*i+j}")
        e(f"  v_fmac_f32 v{128+2*j}, v28, v{8+2*i}")
        e(f"  v_fmac_f32 v{129+2*j}, v29, v{8+2*i}")
        e(f"  v_fmac_f32 v{136+2*j}, v28, v{9+2*i}")
        e(f"  v_fmac_f32 v{137+2*j}, v29, v{9+2*i}")
e("  v_lshlrev_b32 v28, 12, v2")
e("  v_lshl_add_u32 v28, v1, 5, v28")
e(f"  ds_write_b128 v28, v[128:131] offset:{RED2}")
e(f"  ds_write_b128 v28, v[132:135] offset:{RED2+16}")
e(f"  ds_write_b128 v28, v[136:139] offset:{RED2+2048}")
e(f"  ds_write_b128 v28, v[140:143] offset:{RED2+2048+16}")
e("  s_waitcnt lgkmcnt(0)")
e("  s_barrier")
for k in range(4):
    for w in range(4):
        e(f"  ds_read_b32 v{32+4*k+w}, v30 offset:{RED2+4096*w+1024*k}")
e(f"  s_mov_b32 s39, {ACC_OFF+4096}")
e("  s_waitcnt lgkmcnt(0)")
for k in range(4):
    e(f"  v_add_f32 v{32+4*k}, v{32+4*k}, v{33+4*k}")
    e(f"  v_add_f32 v{34+4*k}, v{34+4*k}, v{35+4*k}")
    e(f"  v_add_f32 v{32+4*k}, v{32+4*k}, v{34+4*k}")
    e(f"  buffer_atomic_add_f32 v{32+4*k}, v30, s[20:23], s39 offen offset:{1024*k} sc0")
e("  s_waitcnt vmcnt(0)")
e("B_arrive:")
FLAG = 36864
e("  s_load_dwordx2 s[46:47], s[0:1], 80")
e("  s_load_dwordx2 s[48:49], s[0:1], 72")
e("  s_barrier")
e("  v_cmp_eq_u32 vcc, 0, v0")
e("  s_and_saveexec_b64 s[42:43], vcc")
e("  s_cbranch_execz B_a1")
e("  s_waitcnt lgkmcnt(0)")
srd(24, 46, 256)
e("  v_mov_b32 v3, 0")
e("  v_mov_b32 v4, 1")
e("  buffer_atomic_add v4, v3, s[24:27], 0 offen sc0")
e("  s_waitcnt vmcnt(0)")
e(f"  ds_write_b32 v3, v4 offset:{FLAG}")
e("  s_waitcnt lgkmcnt(0)")
e("B_a1:")
e("  s_mov_b64 exec, s[42:43]")
e("  v_mov_b32 v3, 0")
e("  s_barrier")
e(f"  ds_read_b32 v4, v3 offset:{FLAG}")
e("  s_waitcnt lgkmcnt(0)")
e("  v_readfirstlane_b32 s44, v4")
e("  s_cmp_lg_u32 s44, 170")
e("  s_cbranch_scc1 B_end")
srd(12, 4, 2048)
srd(16, 48, 2048)
e("  v_lshlrev_b32 v30, 2, v0")
e("  v_lshlrev_b32 v31, 1, v0")
e(f"  s_mov_b32 s38, {ACC_OFF}")
e(f"  s_mov_b32 s39, {ACC_OFF+4096}")
for k in range(4):
    e(f"  v_mov_b32 v{32+k}, 0")
    e(f"  v_mov_b32 v{36+k}, 0")
for k in range(4):
    e(f"  buffer_atomic_add_f32 v{32+k}, v30, s[20:23], s38 offen offset:{1024*k} sc0")
    e(f"  buffer_atomic_add_f32 v{36+k}, v30, s[20:23], s39 offen offset:{1024*k} sc0")
    e(f"  buffer_load_ushort v{40+k}, v31, s[12:15], 0 offen offset:{512*k}")
e("  s_waitcnt vmcnt(0)")
for k in range(4):
    s_, y_, x_, t_ = 32+k, 36+k, 40+k, 44
    bf16r(s_, s_)
    bf16r(y_, y_)
    e(f"  v_mul_f32 v{t_}, {f32(-1.4426950408889634)}, v{y_}")
    e(f"  v_exp_f32 v{t_}, v{t_}")
    e("  s_nop 0")
    e(f"  v_add_f32 v{t_}, 1.0, v{t_}")
    e(f"  v_rcp_f32 v{t_}, v{t_}")
    e("  s_nop 0")
    e(f"  v_mul_f32 v{t_}, v{t_}, v{y_}")
    bf16r(t_, t_)
    e(f"  v_mul_f32 v{t_}, v{t_}, v{s_}")
    bf16r(t_, t_)
    e(f"  v_lshlrev_b32 v{x_}, 16, v{x_}")
    e(f"  v_add_f32 v{t_}, v{t_}, v{x_}")
    e(f"  v_cvt_pk_bf16_f32 v{x_}, v{t_}, v{t_}")
    e(f"  buffer_store_short v{x_}, v31, s[16:19], 0 offen offset:{512*k}")
e("B_end:")
e("  s_endpgm")

e('.section .rodata,"a"')
for (k, nv, ns) in (("attn_kernel", 128, 72), ("proj_kernel", 168, 64)):
    e(".p2align 6")
    e(f".amdhsa_kernel {k}")
    e(f"  .amdhsa_next_free_vgpr {nv}")
    e(f"  .amdhsa_next_free_sgpr {ns}")
    e(f"  .amdhsa_accum_offset {nv}")
    e("  .amdhsa_group_segment_fixed_size 0")
    e("  .amdhsa_kernarg_size 96")
    e("  .amdhsa_user_sgpr_count 2")
    e("  .amdhsa_user_sgpr_kernarg_segment_ptr 1")
    e("  .amdhsa_system_sgpr_workgroup_id_x 1")
    e(".end_amdhsa_kernel")

dst = sys.argv[1] if len(sys.argv) > 1 else f"cdna_kernels/{NAME}.s"
open(dst, "w").write("\n".join(out) + "\n")
```

```python
import sys, struct

NAME = "recurrent_scan__mha_block_cached__geglu_ffn__decode"
out = []
def e(s=""):
    out.append(s)
def f32(x):
    return "0x%08x" % struct.unpack("<I", struct.pack("<f", x))[0]

LOG2E = f32(1.4426950408889634)
SCALE = f32(128 ** -0.5)

import os
NT = os.environ.get("NT", "nt")
NTS = (" " + NT) if NT else ""
WNT = os.environ.get("WNT", "")
WTS = (" " + WNT) if WNT else ""

PART_STRIDE = 1024
ACC_OFF = 256 * 1024
WS_SIZE = 0x40000000
GU_WS = ACC_OFF + 8192

def srd(d, p, size):
    e(f"  s_mov_b32 s{d}, s{p}")
    e(f"  s_and_b32 s{d+1}, s{p+1}, 0xffff")
    e(f"  s_mov_b32 s{d+2}, {size}")
    e(f"  s_mov_b32 s{d+3}, 0x00020000")

def row_allreduce(op, v):
    for sh in (8, 4, 2, 1):
        e("  s_nop 1")
        e(f"  {op}_dpp v{v}, v{v}, v{v} row_ror:{sh} row_mask:0xf bank_mask:0xf")

def wave_from_rows(op, v, s0):
    e("  s_nop 1")
    for k in range(4):
        e(f"  v_readlane_b32 s{s0+k}, v{v}, {16*k}")
    e("  s_nop 1")
    e(f"  v_mov_b32 v{v}, s{s0}")
    for k in range(1, 4):
        e(f"  {op} v{v}, s{s0+k}, v{v}")

def bf16r(dst, src):
    e(f"  v_cvt_pk_bf16_f32 v{dst}, v{src}, v{src}")
    e(f"  v_lshlrev_b32 v{dst}, 16, v{dst}")

def layernorm(xr, xf, t, s0):
    for j in range(4):
        e(f"  v_lshlrev_b32 v{xf+2*j}, 16, v{xr+j}")
        e(f"  v_and_b32 v{xf+2*j+1}, 0xffff0000, v{xr+j}")
    e(f"  v_add_f32 v{t}, v{xf}, v{xf+1}")
    for j in range(2, 8):
        e(f"  v_add_f32 v{t}, v{t}, v{xf+j}")
    row_allreduce("v_add_f32", t)
    wave_from_rows("v_add_f32", t, s0)
    e(f"  v_mul_f32 v{t}, {f32(1.0/512)}, v{t}")
    e(f"  v_sub_f32 v{t+2}, v{xf}, v{t}")
    e(f"  v_mul_f32 v{t+1}, v{t+2}, v{t+2}")
    for j in range(1, 8):
        e(f"  v_sub_f32 v{t+2}, v{xf+j}, v{t}")
        e(f"  v_fmac_f32 v{t+1}, v{t+2}, v{t+2}")
    row_allreduce("v_add_f32", t+1)
    wave_from_rows("v_add_f32", t+1, s0)
    e(f"  v_mul_f32 v{t+1}, {f32(1.0/512)}, v{t+1}")
    bf16r(t, t)
    bf16r(t+1, t+1)
    e(f"  v_add_f32 v{t+1}, {f32(1e-5)}, v{t+1}")
    bf16r(t+1, t+1)
    e(f"  v_sqrt_f32 v{t+1}, v{t+1}")
    e("  s_nop 0")
    bf16r(t+1, t+1)
    e(f"  v_rcp_f32 v{t+2}, v{t+1}")
    e("  s_nop 0")
    for j in range(8):
        e(f"  v_sub_f32 v{t+3}, v{xf+j}, v{t}")
        bf16r(t+3, t+3)
        e(f"  v_mul_f32 v{t+4}, v{t+3}, v{t+2}")
        e(f"  v_fma_f32 v{t+5}, -v{t+4}, v{t+1}, v{t+3}")
        e(f"  v_fma_f32 v{t+4}, v{t+5}, v{t+2}, v{t+4}")
        bf16r(xf+j, t+4)

def gelu_mul(g, u, d):
    e(f"  v_mul_f32 v{d}, v{g}, v{g}")
    e(f"  v_mul_f32 v{d}, v{d}, v{g}")
    e(f"  v_mul_f32 v{d}, {f32(0.044715)}, v{d}")
    e(f"  v_add_f32 v{d}, v{d}, v{g}")
    e(f"  v_mul_f32 v{d}, {f32(2*0.7978845608028654*1.4426950408889634)}, v{d}")
    e(f"  v_exp_f32 v{d}, v{d}")
    e("  s_nop 0")
    e(f"  v_add_f32 v{d}, 1.0, v{d}")
    e(f"  v_rcp_f32 v{d}, v{d}")
    e("  s_nop 0")
    e(f"  v_sub_f32 v{d}, 1.0, v{d}")
    e(f"  v_mul_f32 v{d}, v{d}, v{g}")
    bf16r(d, d)
    e(f"  v_mul_f32 v{d}, v{d}, v{u}")
    bf16r(d, d)

NWG_A = 256
e(f"; @launch kernel=attn_kernel grid=({NWG_A},1,1) block=(1024,1,1) lds=77824")
e("; @launch kernel=proj_kernel grid=(171,1,1) block=(256,1,1) lds=40960")
e('.amdgcn_target "amdgcn-amd-amdhsa--gfx950"')
e(".text")

QRED = 0
Q2 = 32768
ML = 36864
XN = 37888
FRED = 43008

K0, V0, WQ0 = 32, 64, 96
Q, ACC, M, L, S = 4, 8, 16, 17, 18
PLO, PHI, T = 96, 104, 112
VO0, VO1 = 2, 3
NBLK = 8

e(".globl attn_kernel\n.p2align 8\n.type attn_kernel,@function\nattn_kernel:")
e(f"  s_cmp_ge_u32 s2, {NWG_A}")
e("  s_cbranch_scc1 A_end")
e("  s_load_dwordx8 s[4:11], s[0:1], 0")
e("  s_load_dwordx2 s[12:13], s[0:1], 88")
e("  s_load_dwordx4 s[52:55], s[0:1], 48")
e("  v_and_b32 v1, 63, v0")
e("  v_lshrrev_b32 v26, 6, v0")
e("  s_lshr_b32 s37, s2, 2")
e("  s_lshr_b32 s38, s37, 5")
e("  s_and_b32 s39, s37, 31")
if int(os.environ.get("ILV", "1")) == 2:
    e("  s_lshl_b32 s36, s37, 22")
    e("  s_and_b32 s40, s2, 3")
    e("  s_lshl_b32 s40, s40, 17")
    e("  s_add_u32 s36, s36, s40")
else:
    e("  s_lshl_b32 s36, s2, 20")
e("  s_lshl_b32 s40, s38, 10")
e("  s_lshl_b32 s41, s39, 8")
e("  v_lshlrev_b32 v27, 4, v1")
ILV = int(os.environ.get("ILV", "1"))
STEP = {0: 8192, 1: 131072, 2: 524288}[ILV]
e(f"  v_lshl_add_u32 v{VO0}, v26, {13 if ILV else 16}, v27")
e(f"  v_add_u32 v{VO1}, 4096, v{VO0}")
e("  v_lshrrev_b32 v28, 4, v0")
e("  v_and_b32 v29, 15, v0")
e("  v_lshlrev_b32 v29, 4, v29")
e("  v_lshl_add_u32 v28, v28, 13, v29")
e("  s_waitcnt lgkmcnt(0)")
srd(16, 6, 0x10000000)
srd(20, 8, 0x10000000)
srd(24, 10, 0x400000)
srd(28, 4, 2048)
srd(32, 12, WS_SIZE)
e("  s_cmp_lt_u32 s2, 176")
e("  s_cselect_b32 s51, %d, 0" % (0 if os.environ.get("NOFFN") else 1409024))
e("  s_mov_b32 s56, s52\n  s_and_b32 s57, s53, 0xffff\n  s_mov_b32 s58, s51\n  s_mov_b32 s59, 0x00020000")
e("  s_mov_b32 s60, s54\n  s_and_b32 s61, s55, 0xffff\n  s_mov_b32 s62, s51\n  s_mov_b32 s63, 0x00020000")
e("  s_and_b32 s65, s2, 7")
e("  s_lshr_b32 s66, s2, 3")
e(f"  s_mul_i32 s49, s65, {64*2752}")
e("  s_lshl_b32 s50, s66, 7")
e("  s_add_u32 s49, s49, s50")
e("  v_and_b32 v29, 511, v0")
e("  v_lshrrev_b32 v29, 3, v29")
e("  s_movk_i32 s48, 2752")
e("  v_mul_lo_u32 v29, v29, s48")
e("  v_and_b32 v30, 7, v0")
e("  v_lshl_add_u32 v29, v30, 4, v29")
e("  v_readfirstlane_b32 s64, v26")

def kv_loads(base, rsrc, lo=0, hi=8):
    for i in range(lo, hi):
        vo = VO0 if i < 4 else VO1
        e(f"  buffer_load_dwordx4 v[{base+4*i}:{base+4*i+3}], v{vo}, s[{rsrc}:{rsrc+3}], s36 offen offset:{1024*(i%4)}{NTS}")

e("  buffer_load_dwordx4 v[16:19], v27, s[28:31], 0 offen")
e("  buffer_load_dwordx4 v[4:7], v27, s[28:31], 0 offen offset:1024")
for i in range(8):
    e(f"  buffer_load_dwordx4 v[{WQ0+4*i}:{WQ0+4*i+3}], v28, s[24:27], s41 offen{WTS}")
    if i < 7:
        e("  s_add_u32 s41, s41, 0x80000")
e("  s_cmp_ge_u32 s64, 8")
e("  s_cbranch_scc1 A_ldu")
e(f"  buffer_load_dwordx4 v[92:95], v29, s[56:59], s49 offen{WTS}")
e("  s_branch A_ldd")
e("A_ldu:")
e(f"  buffer_load_dwordx4 v[92:95], v29, s[60:63], s49 offen{WTS}")
e("A_ldd:")
ROT = int(os.environ.get("ROT", "0"))
if ROT:
    e("  s_mov_b32 s68, s36")
    e(f"  s_lshr_b32 s67, s2, {ROT-1}")
    e("  s_and_b32 s67, s67, 7")
    e("  s_lshl_b32 s36, s67, 17")
    e("  s_add_u32 s36, s36, s68")
    kv_loads(K0, 16)
    e("  s_add_u32 s36, s67, 1")
    e("  s_and_b32 s36, s36, 7")
    e("  s_lshl_b32 s36, s36, 17")
    e("  s_add_u32 s36, s36, s68")
    kv_loads(V0, 16, 0, 7)
else:
    kv_loads(K0, 16)
    e(f"  s_add_u32 s36, s36, {STEP}")
    kv_loads(V0, 16, 0, 7)
e("  s_cmp_lg_u32 s2, 0")
e("  s_cbranch_scc1 A_nozero")
e("  v_cmp_gt_u32 vcc, 512, v0")
e("  s_and_saveexec_b64 s[42:43], vcc")
e("  s_cbranch_execz A_zrest")
e("  v_mov_b32 v20, 0\n  v_mov_b32 v21, 0\n  v_mov_b32 v22, 0\n  v_mov_b32 v23, 0")
e("  v_lshlrev_b32 v24, 4, v0")
e(f"  v_add_u32 v24, {ACC_OFF}, v24")
e("  buffer_store_dwordx4 v[20:23], v24, s[32:35], 0 offen")
e("A_zrest:")
e("  s_mov_b64 exec, s[42:43]")
e("  s_nop 1")
e("A_nozero:")
e("  s_waitcnt vmcnt(24)")
layernorm(16, 8, 20, 44)
e("  v_lshlrev_b32 v30, 5, v1")
e(f"  ds_write_b128 v30, v[8:11] offset:{XN}")
e(f"  ds_write_b128 v30, v[12:15] offset:{XN+16}")
layernorm(4, 8, 20, 44)
e(f"  ds_write_b128 v30, v[8:11] offset:{XN+2048}")
e(f"  ds_write_b128 v30, v[12:15] offset:{XN+2048+16}")
e("  v_lshrrev_b32 v31, 4, v0")
e("  v_lshlrev_b32 v31, 2, v31")
e("  s_lshl_b32 s40, s38, 11")
e("  v_add_u32 v31, s40, v31")
e("  v_and_b32 v30, 511, v0")
e("  v_lshrrev_b32 v30, 3, v30")
e("  s_lshl_b32 s40, s65, 8")
e("  v_lshl_add_u32 v30, v30, 2, s40")
e("  s_waitcnt lgkmcnt(0)")
for i in range(8):
    e(f"  ds_read_b32 v{16+i}, v31 offset:{XN+256*i}")
e(f"  ds_read_b32 v27, v30 offset:{XN}")
e(f"  ds_read_b32 v28, v30 offset:{XN+2048}")
for j in range(8):
    e(f"  v_mov_b32 v{8+j}, 0")
e("  s_waitcnt vmcnt(16) lgkmcnt(0)")
for i in range(8):
    for j in range(4):
        e(f"  v_lshlrev_b32 v24, 16, v{WQ0+4*i+j}")
        e(f"  v_and_b32 v25, 0xffff0000, v{WQ0+4*i+j}")
        e(f"  v_fmac_f32 v{8+2*j}, v24, v{16+i}")
        e(f"  v_fmac_f32 v{8+2*j+1}, v25, v{16+i}")
e("  v_lshlrev_b32 v30, 5, v0")
e(f"  ds_write_b128 v30, v[8:11] offset:{QRED}")
e(f"  ds_write_b128 v30, v[12:15] offset:{QRED+16}")
e("  s_waitcnt vmcnt(15)")
for j in range(4):
    e(f"  v_lshlrev_b32 v{112+2*j}, 16, v{92+j}")
    e(f"  v_and_b32 v{113+2*j}, 0xffff0000, v{92+j}")
for j in range(8):
    e(f"  v_mul_f32 v{96+j}, v{112+j}, v27")
    e(f"  v_mul_f32 v{104+j}, v{112+j}, v28")
kv_loads(V0, 16, 7, 8)
e(f"  s_sub_u32 s36, s36, {STEP}")
for j in range(16):
    e(f"  v_add_f32_dpp v{96+j}, v{96+j}, v{96+j} row_ror:8 row_mask:0xf bank_mask:0xf")
e("  v_lshrrev_b32 v24, 4, v0")
e("  v_lshlrev_b32 v24, 9, v24")
e("  v_and_b32 v25, 7, v0")
e("  v_lshl_add_u32 v24, v25, 5, v24")
e(f"  ds_write_b128 v24, v[96:99] offset:{FRED}")
e(f"  ds_write_b128 v24, v[100:103] offset:{FRED+16}")
e(f"  ds_write_b128 v24, v[104:107] offset:{FRED+256}")
e(f"  ds_write_b128 v24, v[108:111] offset:{FRED+256+16}")
e("  v_and_b32 v24, 127, v0")
e("  v_lshrrev_b32 v25, 7, v0")
e("  v_lshlrev_b32 v24, 2, v24")
e("  v_lshl_add_u32 v31, v25, 12, v24")
e("  s_waitcnt lgkmcnt(0)")
e("  s_barrier")
for r in range(8):
    e(f"  ds_read_b32 v{16+r}, v31 offset:{QRED+512*r}")
e("  v_lshlrev_b32 v29, 2, v0")
e("  s_waitcnt lgkmcnt(0)")
for r in range(1, 8):
    e(f"  v_add_f32 v16, v16, v{16+r}")
e(f"  ds_write_b32 v29, v16 offset:{Q2}")
e("  s_cmp_ge_u32 s64, 4")
e("  s_cbranch_scc1 A_nf1")
e("  s_cmp_ge_u32 s2, 176")
e("  s_cbranch_scc1 A_nf1")
e("  v_lshrrev_b32 v24, 7, v0")
e("  v_and_b32 v25, 127, v0")
e("  v_lshlrev_b32 v24, 14, v24")
e("  v_lshl_add_u32 v24, v25, 2, v24")
for p in range(32):
    e(f"  ds_read_b32 v{96+p}, v24 offset:{FRED+512*p}")
e("  s_lshl_b32 s48, s65, 2")
e("  s_add_u32 s48, s48, s64")
e("  s_mul_i32 s48, s48, 5632")
e("  s_lshl_b32 s49, s66, 8")
e("  s_add_u32 s48, s48, s49")
e(f"  s_add_u32 s48, s48, {GU_WS}")
e("  v_lshlrev_b32 v25, 2, v1")
e("  s_waitcnt lgkmcnt(0)")
for p in range(1, 32):
    e(f"  v_add_f32 v96, v96, v{96+p}")
e("  buffer_store_dword v96, v25, s[32:35], s48 offen")
e("A_nf1:")
e("  v_and_b32 v24, 15, v1")
e("  v_lshlrev_b32 v24, 5, v24")
e("  s_waitcnt lgkmcnt(0)")
e("  s_barrier")
for jj in range(8):
    e(f"  ds_read_b128 v[{WQ0+8*(jj%4)}:{WQ0+8*(jj%4)+3}], v24 offset:{Q2+512*jj}")
    e(f"  ds_read_b128 v[{WQ0+8*(jj%4)+4}:{WQ0+8*(jj%4)+7}], v24 offset:{Q2+512*jj+16}")
    if jj % 4 == 3:
        e("  s_waitcnt lgkmcnt(0)")
        for k in range(4):
            for j in range(8):
                if jj == 3 and k == 0:
                    e(f"  v_mov_b32 v{8+j}, v{WQ0+j}")
                else:
                    e(f"  v_add_f32 v{8+j}, v{8+j}, v{WQ0+8*k+j}")
for j in range(4):
    e(f"  v_cvt_pk_bf16_f32 v{Q+j}, v{8+2*j}, v{8+2*j+1}")
for j in range(8):
    e(f"  v_mov_b32 v{ACC+j}, 0")
e(f"  v_mov_b32 v{M}, 0xff800000")
e(f"  v_mov_b32 v{L}, 0")
e(f"  s_mov_b32 s44, {SCALE}")
e(f"  s_mov_b32 s45, {LOG2E}")
e("  s_mov_b32 s46, 0")

PURE = int(os.environ.get("PURE", "0"))
def block(last):
    if PURE:
        e("  s_waitcnt vmcnt(8)")
        e(f"  v_add_f32 v{ACC}, v{K0}, v{ACC}")
        if not last:
            kv_loads(K0, 16)
        e("  s_waitcnt vmcnt(0)" if last else "  s_waitcnt vmcnt(8)")
        e(f"  v_add_f32 v{ACC}, v{V0}, v{ACC}")
        if not last:
            kv_loads(V0, 20)
            e(f"  s_add_u32 s36, s36, {STEP}")
        return
    e("  s_waitcnt vmcnt(8)")
    for t in range(4):
        for i in range(8):
            c = "0" if t == 0 else f"v{S+i}"
            e(f"  v_dot2_f32_bf16 v{S+i}, v{K0+4*i+t}, v{Q+t}, {c}")
    if not last:
        kv_loads(K0, 16)
    for sh in (8, 4, 2, 1):
        for i in range(8):
            e(f"  v_add_f32_dpp v{S+i}, v{S+i}, v{S+i} row_ror:{sh} row_mask:0xf bank_mask:0xf")
    for rnd in range(2):
        for p in range(4):
            e(f"  v_cvt_pk_bf16_f32 v{T+p}, v{S+2*p}, v{S+2*p+1}")
        for p in range(4):
            e(f"  v_lshlrev_b32 v{S+2*p}, 16, v{T+p}")
            e(f"  v_and_b32 v{S+2*p+1}, 0xffff0000, v{T+p}")
        if rnd == 0:
            for i in range(8):
                e(f"  v_mul_f32 v{S+i}, s44, v{S+i}")
    MN, A = T+4, T+5
    e(f"  v_max3_f32 v{MN}, v{M}, v{S}, v{S+1}")
    for p in range(1, 4):
        e(f"  v_max3_f32 v{MN}, v{MN}, v{S+2*p}, v{S+2*p+1}")
    e(f"  v_sub_f32 v{A}, v{M}, v{MN}")
    for i in range(8):
        e(f"  v_sub_f32 v{S+i}, v{S+i}, v{MN}")
    e(f"  v_mul_f32 v{A}, s45, v{A}")
    for i in range(8):
        e(f"  v_mul_f32 v{S+i}, s45, v{S+i}")
    e(f"  v_exp_f32 v{A}, v{A}")
    for i in range(8):
        e(f"  v_exp_f32 v{S+i}, v{S+i}")
    e(f"  v_mov_b32 v{M}, v{MN}")
    for j in range(8):
        e(f"  v_mul_f32 v{ACC+j}, v{ACC+j}, v{A}")
    for p in range(4):
        e(f"  v_add_f32 v{T+p}, v{S+2*p}, v{S+2*p+1}")
    e(f"  v_add_f32 v{T}, v{T}, v{T+1}")
    e(f"  v_add_f32 v{T+2}, v{T+2}, v{T+3}")
    e(f"  v_add_f32 v{T}, v{T}, v{T+2}")
    e(f"  v_fma_f32 v{L}, v{L}, v{A}, v{T}")
    for i in range(8):
        e(f"  v_cvt_pk_bf16_f32 v{PLO+i}, v{S+i}, 0")
        e(f"  v_cvt_pk_bf16_f32 v{PHI+i}, 0, v{S+i}")
    e("  s_waitcnt vmcnt(0)" if last else "  s_waitcnt vmcnt(8)")
    for i in range(8):
        for t in range(4):
            e(f"  v_dot2_f32_bf16 v{ACC+2*t}, v{V0+4*i+t}, v{PLO+i}, v{ACC+2*t}")
            e(f"  v_dot2_f32_bf16 v{ACC+2*t+1}, v{V0+4*i+t}, v{PHI+i}, v{ACC+2*t+1}")
    if not last:
        kv_loads(V0, 20)
        e(f"  s_add_u32 s36, s36, {STEP}")

SC = 96
TT = 26
def issue(n):
    buf = K0 if n % 2 == 0 else V0
    r = 16 if n < 8 else 20
    if ROT:
        e(f"  s_add_u32 s46, s67, {n%8}")
        e("  s_and_b32 s46, s46, 7")
        e("  s_lshl_b32 s46, s46, 17")
        e("  s_add_u32 s46, s46, s68")
    else:
        e(f"  s_add_u32 s46, s36, {STEP*(n%8)}")
    for i in range(8):
        vo = VO0 if i < 4 else VO1
        e(f"  buffer_load_dwordx4 v[{buf+4*i}:{buf+4*i+3}], v{vo}, s[{r}:{r+3}], s46 offen offset:{1024*(i%4)}{NTS}")
for n in range(16):
    buf = K0 if n % 2 == 0 else V0
    e("  s_waitcnt vmcnt(0)" if n == 15 else "  s_waitcnt vmcnt(8)")
    if n < 8:
        for t in range(4):
            for i in range(8):
                c = "0" if t == 0 else f"v{S+i}"
                e(f"  v_dot2_f32_bf16 v{S+i}, v{buf+4*i+t}, v{Q+t}, {c}")
        issue(n + 2)
        for sh in (8, 4, 2, 1):
            for i in range(8):
                e(f"  v_add_f32_dpp v{S+i}, v{S+i}, v{S+i} row_ror:{sh} row_mask:0xf bank_mask:0xf")
        for p in range(4):
            e(f"  v_cvt_pk_bf16_f32 v{TT+p}, v{S+2*p}, v{S+2*p+1}")
        for p in range(4):
            e(f"  v_lshlrev_b32 v{S+2*p}, 16, v{TT+p}")
            e(f"  v_and_b32 v{S+2*p+1}, 0xffff0000, v{TT+p}")
        for i in range(8):
            e(f"  v_mul_f32 v{S+i}, s44, v{S+i}")
        for p in range(4):
            e(f"  v_cvt_pk_bf16_f32 v{SC+4*n+p}, v{S+2*p}, v{S+2*p+1}")
            e(f"  v_max3_f32 v{M}, v{M}, v{S+2*p}, v{S+2*p+1}")
        if n == 7:
            bf16r(M, M)
    else:
        k = n - 8
        for p in range(4):
            e(f"  v_lshlrev_b32 v{S+2*p}, 16, v{SC+4*k+p}")
            e(f"  v_and_b32 v{S+2*p+1}, 0xffff0000, v{SC+4*k+p}")
        for i in range(8):
            e(f"  v_sub_f32 v{S+i}, v{S+i}, v{M}")
        for i in range(8):
            e(f"  v_mul_f32 v{S+i}, s45, v{S+i}")
        for i in range(8):
            e(f"  v_exp_f32 v{S+i}, v{S+i}")
        for p in range(4):
            e(f"  v_add_f32 v{TT+p}, v{S+2*p}, v{S+2*p+1}")
        e(f"  v_add_f32 v{TT}, v{TT}, v{TT+1}")
        e(f"  v_add_f32 v{TT+2}, v{TT+2}, v{TT+3}")
        e(f"  v_add_f32 v{TT}, v{TT}, v{TT+2}")
        e(f"  v_add_f32 v{L}, v{L}, v{TT}")
        for i in range(8):
            lo, hi = TT + 2*(i % 2), TT + 2*(i % 2) + 1
            e(f"  v_cvt_pk_bf16_f32 v{lo}, v{S+i}, 0")
            e(f"  v_cvt_pk_bf16_f32 v{hi}, 0, v{S+i}")
            for t in range(4):
                e(f"  v_dot2_f32_bf16 v{ACC+2*t}, v{buf+4*i+t}, v{lo}, v{ACC+2*t}")
                e(f"  v_dot2_f32_bf16 v{ACC+2*t+1}, v{buf+4*i+t}, v{hi}, v{ACC+2*t+1}")
        if n + 2 < 16:
            issue(n + 2)
e("  v_lshrrev_b32 v26, 6, v0")
e("  v_and_b32 v24, 127, v0")
e("  v_lshrrev_b32 v25, 7, v0")
e("  v_lshlrev_b32 v24, 2, v24")
e("  v_lshl_add_u32 v31, v25, 12, v24")
e("A_epi:")
e("  s_nop 3")
e(f"  v_mov_b32 v20, v{M}")
wave_from_rows("v_max_f32", 20, 48)
e(f"  v_sub_f32 v21, v{M}, v20")
e("  v_mul_f32 v21, s45, v21")
e("  v_exp_f32 v21, v21")
e("  s_nop 0")
e(f"  v_mul_f32 v{L}, v{L}, v21")
for j in range(8):
    e(f"  v_mul_f32 v{ACC+j}, v{ACC+j}, v21")
wave_from_rows("v_add_f32", L, 48)
e("  v_lshlrev_b32 v30, 5, v0")
e(f"  ds_write_b128 v30, v[{ACC}:{ACC+3}] offset:{QRED}")
e(f"  ds_write_b128 v30, v[{ACC+4}:{ACC+7}] offset:{QRED+16}")
e("  v_lshlrev_b32 v29, 2, v26")
e(f"  ds_write_b32 v29, v20 offset:{ML}")
e(f"  ds_write_b32 v29, v{L} offset:{ML+64}")
e("  v_mov_b32 v24, 0")
e("  v_lshrrev_b32 v25, 7, v0")
e("  v_lshlrev_b32 v28, 3, v25")
e("  s_waitcnt lgkmcnt(0)")
e("  s_barrier")
for k in range(4):
    e(f"  ds_read_b128 v[{32+4*k}:{35+4*k}], v24 offset:{ML+16*k}")
e(f"  ds_read_b64 v[48:49], v28 offset:{ML}")
for r in range(8):
    e(f"  ds_read_b32 v{50+r}, v31 offset:{QRED+512*r}")
e("  s_waitcnt lgkmcnt(0)")
e("  v_max3_f32 v60, v32, v33, v34")
for k in range(35, 47, 2):
    e(f"  v_max3_f32 v60, v60, v{k}, v{k+1}")
e("  v_max_f32 v60, v60, v47")
e("  v_sub_f32 v48, v48, v60\n  v_sub_f32 v49, v49, v60")
e("  v_mul_f32 v48, s45, v48\n  v_mul_f32 v49, s45, v49")
e("  v_exp_f32 v48, v48\n  v_exp_f32 v49, v49")
e("  v_add_f32 v50, v50, v51\n  v_add_f32 v52, v52, v53\n  v_add_f32 v54, v54, v55\n  v_add_f32 v56, v56, v57")
e("  v_add_f32 v50, v50, v52\n  v_add_f32 v54, v54, v56")
e("  v_mul_f32 v50, v50, v48")
e("  v_fmac_f32 v50, v54, v49")
e("  v_lshlrev_b32 v29, 2, v0")
e(f"  ds_write_b32 v29, v50 offset:{Q2}")
e("  s_waitcnt lgkmcnt(0)")
e("  s_barrier")
e("  v_cmp_gt_u32 vcc, 128, v0")
e("  s_and_saveexec_b64 s[42:43], vcc")
e("  s_cbranch_execz A_end")
for r in range(8):
    e(f"  ds_read_b32 v{50+r}, v29 offset:{Q2+512*r}")
for k in range(4):
    e(f"  ds_read_b128 v[{64+4*k}:{67+4*k}], v24 offset:{ML+64+16*k}")
e("  s_waitcnt lgkmcnt(0)")
for r in range(1, 8):
    e(f"  v_add_f32 v50, v50, v{50+r}")
e("  v_mov_b32 v61, 0")
for k in range(16):
    e(f"  v_sub_f32 v{32+k}, v{32+k}, v60")
    e(f"  v_mul_f32 v{32+k}, s45, v{32+k}")
    e(f"  v_exp_f32 v{32+k}, v{32+k}")
    e("  s_nop 0")
    e(f"  v_fmac_f32 v61, v{32+k}, v{64+k}")
e("  s_lshl_b32 s47, s2, 10")
e("  buffer_store_dword v50, v29, s[32:35], s47 offen")
e("  v_cmp_eq_u32 vcc, 0, v0")
e("  s_and_saveexec_b64 s[42:43], vcc")
e("  s_cbranch_execz A_end")
e("  buffer_store_dwordx2 v[60:61], v24, s[32:35], s47 offen offset:512")
e("A_end:")
e("  s_endpgm")

e(".globl proj_kernel\n.p2align 8\n.type proj_kernel,@function\nproj_kernel:")
e("  s_cmp_ge_u32 s2, 171")
e("  s_cbranch_scc1 B_end")
e("  s_load_dwordx2 s[4:5], s[0:1], 0")
e("  s_load_dwordx2 s[6:7], s[0:1], 32")
e("  s_load_dwordx4 s[8:11], s[0:1], 48")
e("  s_load_dwordx2 s[12:13], s[0:1], 64")
e("  s_load_dwordx2 s[14:15], s[0:1], 88")
e("  s_load_dwordx4 s[48:51], s[0:1], 72")
e("  v_and_b32 v1, 63, v0")
e("  v_lshrrev_b32 v2, 6, v0")
e(f"  s_mov_b32 s45, {LOG2E}")
e("  s_waitcnt lgkmcnt(0)")
srd(20, 14, WS_SIZE)
e("  s_cmp_ge_u32 s2, 128")
e("  s_cbranch_scc1 B_ffn")
O_OFF, RED = 0, 2048
srd(16, 6, 0x400000)
e("  s_lshr_b32 s36, s2, 3")
e("  s_and_b32 s37, s2, 7")
e("  s_lshl_b32 s38, s36, 18")
e("  s_lshl_b32 s39, s37, 7")
e("  s_add_u32 s38, s38, s39")
e("  s_lshl_b32 s40, s36, 13")
e("  v_lshrrev_b32 v3, 1, v2")
e("  v_and_b32 v4, 1, v2")
e("  v_lshlrev_b32 v5, 17, v3")
e("  v_lshl_add_u32 v5, v4, 12, v5")
e("  v_lshl_add_u32 v6, v1, 3, v5")
for s in range(4):
    e(f"  buffer_load_dwordx2 v[{64+2*s}:{65+2*s}], v6, s[20:23], s40 offen offset:{1024*s}")
    e(f"  buffer_load_dwordx2 v[{72+2*s}:{73+2*s}], v5, s[20:23], s40 offen offset:{1024*s+512}")
e("  v_lshrrev_b32 v7, 3, v0")
e("  v_and_b32 v8, 7, v0")
e("  v_lshlrev_b32 v8, 4, v8")
e("  v_lshl_add_u32 v9, v7, 10, v8")
for i in range(8):
    e(f"  buffer_load_dwordx4 v[{32+4*i}:{35+4*i}], v9, s[16:19], s38 offen{WTS}")
    if i < 7:
        e("  s_add_u32 s38, s38, 0x8000")
e("  s_waitcnt vmcnt(8)")
e("  v_max3_f32 v10, v72, v74, v76")
e("  v_max_f32 v10, v10, v78")
for s in range(4):
    e(f"  v_sub_f32 v{72+2*s}, v{72+2*s}, v10")
    e(f"  v_mul_f32 v{72+2*s}, s45, v{72+2*s}")
    e(f"  v_exp_f32 v{72+2*s}, v{72+2*s}")
e("  s_nop 0")
e("  v_mul_f32 v11, v72, v73\n  v_mul_f32 v12, v72, v64\n  v_mul_f32 v13, v72, v65")
for s in range(1, 4):
    e(f"  v_fmac_f32 v11, v{72+2*s}, v{73+2*s}")
    e(f"  v_fmac_f32 v12, v{72+2*s}, v{64+2*s}")
    e(f"  v_fmac_f32 v13, v{72+2*s}, v{65+2*s}")
e("  v_rcp_f32 v14, v11")
e("  s_nop 0")
for r in (12, 13):
    e(f"  v_mul_f32 v15, v{r}, v14")
    e(f"  v_fma_f32 v16, -v15, v11, v{r}")
    e("  v_fma_f32 v15, v16, v14, v15")
    bf16r(r, 15)
e("  v_lshlrev_b32 v15, 10, v4")
e("  v_lshl_add_u32 v15, v1, 4, v15")
e("  v_lshl_add_u32 v15, v3, 2, v15")
e(f"  ds_write_b32 v15, v12 offset:{O_OFF}")
e(f"  ds_write_b32 v15, v13 offset:{O_OFF+8}")
e("  v_lshlrev_b32 v16, 3, v7")
for j in range(16):
    e(f"  v_mov_b32 v{96+j}, 0")
e("  s_waitcnt lgkmcnt(0)")
e("  s_barrier")
for i in range(8):
    e(f"  ds_read_b64 v[{64+2*i}:{65+2*i}], v16 offset:{O_OFF+256*i}")
e("  s_waitcnt vmcnt(0) lgkmcnt(0)")
for i in range(8):
    for j in range(4):
        e(f"  v_lshlrev_b32 v18, 16, v{32+4*i+j}")
        e(f"  v_and_b32 v19, 0xffff0000, v{32+4*i+j}")
        e(f"  v_fmac_f32 v{96+2*j}, v18, v{64+2*i}")
        e(f"  v_fmac_f32 v{97+2*j}, v19, v{64+2*i}")
        e(f"  v_fmac_f32 v{104+2*j}, v18, v{65+2*i}")
        e(f"  v_fmac_f32 v{105+2*j}, v19, v{65+2*i}")
e("  s_nop 1")
for j in range(16):
    e(f"  v_add_f32_dpp v{96+j}, v{96+j}, v{96+j} row_ror:8 row_mask:0xf bank_mask:0xf")
e("  v_lshrrev_b32 v17, 4, v0")
e("  v_lshlrev_b32 v17, 9, v17")
e("  v_and_b32 v18, 7, v0")
e("  v_lshl_add_u32 v17, v18, 5, v17")
e(f"  ds_write_b128 v17, v[96:99] offset:{RED}")
e(f"  ds_write_b128 v17, v[100:103] offset:{RED+16}")
e(f"  ds_write_b128 v17, v[104:107] offset:{RED+256}")
e(f"  ds_write_b128 v17, v[108:111] offset:{RED+256+16}")
e("  v_lshlrev_b32 v18, 2, v0")
e("  s_waitcnt lgkmcnt(0)")
e("  s_barrier")
e("  v_cmp_gt_u32 vcc, 128, v0")
e("  s_and_saveexec_b64 s[42:43], vcc")
e("  s_cbranch_execz B_w1")
for p in range(16):
    e(f"  ds_read_b32 v{32+p}, v18 offset:{RED+512*p}")
e("  v_lshlrev_b32 v19, 11, v2")
e("  v_lshl_add_u32 v19, v1, 2, v19")
e("  s_lshl_b32 s39, s37, 8")
e(f"  s_add_u32 s39, s39, {ACC_OFF}")
e("  s_waitcnt lgkmcnt(0)")
for p in range(1, 16):
    e(f"  v_add_f32 v32, v32, v{32+p}")
e("  buffer_atomic_add_f32 v32, v19, s[20:23], s39 offen sc0")
e("  s_waitcnt vmcnt(0)")
e("B_w1:")
e("  s_mov_b64 exec, s[42:43]")
e("  s_branch B_arrive")
e("B_ffn:")
RED2 = 16384
srd(28, 12, 1409024)
e("  s_sub_u32 s36, s2, 128")
e("  s_lshl_b32 s39, s36, 15")
H_OFF = 0
e("  s_lshl_b32 s38, s36, 7")
e(f"  s_add_u32 s38, s38, {GU_WS}")
e("  v_lshrrev_b32 v3, 5, v1")
e("  v_and_b32 v4, 31, v1")
e("  s_movk_i32 s40, 5632")
e("  v_mul_lo_u32 v5, v3, s40")
e("  v_lshl_add_u32 v5, v4, 2, v5")
e("  v_add_u32 v8, 11264, v5")
e("  v_readfirstlane_b32 s41, v2")
e("  s_cmp_lg_u32 s41, 0")
e("  s_cbranch_scc1 B_d0")
for rg in range(8):
    e(f"  buffer_load_dword v{32+rg}, v5, s[20:23], s38 offen")
    e(f"  buffer_load_dword v{40+rg}, v8, s[20:23], s38 offen")
    if rg < 7:
        e(f"  s_add_u32 s38, s38, {4*5632}")
e("B_d0:")
e("  v_lshlrev_b32 v7, 13, v2")
e("  v_lshl_add_u32 v7, v1, 4, v7")
e("  v_add_u32 v6, 4096, v7")
for i in range(8):
    e(f"  buffer_load_dwordx4 v[{96+4*i}:{99+4*i}], v{7 if i < 4 else 6}, s[28:31], s39 offen offset:{1024*(i%4)}{WTS}")
e("  s_cmp_lg_u32 s41, 0")
e("  s_cbranch_scc1 B_d1")
e("  s_waitcnt vmcnt(8)")
for rg in range(1, 8):
    e(f"  v_add_f32 v32, v32, v{32+rg}")
    e(f"  v_add_f32 v40, v40, v{40+rg}")
bf16r(32, 32)
bf16r(40, 40)
gelu_mul(32, 40, 34)
e("  v_lshlrev_b32 v4, 3, v4")
e("  v_lshl_add_u32 v4, v3, 2, v4")
e(f"  ds_write_b32 v4, v34 offset:{H_OFF}")
e("  s_waitcnt lgkmcnt(0)")
e("B_d1:")
for j in range(16):
    e(f"  v_mov_b32 v{128+j}, 0")
e("  v_lshlrev_b32 v30, 2, v0")
e("  v_lshlrev_b32 v27, 6, v2")
e("  s_barrier")
for i in range(8):
    e(f"  ds_read_b64 v[{8+2*i}:{9+2*i}], v27 offset:{H_OFF+8*i}")
e("  s_waitcnt lgkmcnt(0)")
for i in range(8):
    e(f"  s_waitcnt vmcnt({7-i})")
    for j in range(4):
        e(f"  v_lshlrev_b32 v28, 16, v{96+4*i+j}")
        e(f"  v_and_b32 v29, 0xffff0000, v{96+4*i+j}")
        e(f"  v_fmac_f32 v{128+2*j}, v28, v{8+2*i}")
        e(f"  v_fmac_f32 v{129+2*j}, v29, v{8+2*i}")
        e(f"  v_fmac_f32 v{136+2*j}, v28, v{9+2*i}")
        e(f"  v_fmac_f32 v{137+2*j}, v29, v{9+2*i}")
e("  v_lshlrev_b32 v28, 12, v2")
e("  v_lshl_add_u32 v28, v1, 5, v28")
e(f"  ds_write_b128 v28, v[128:131] offset:{RED2}")
e(f"  ds_write_b128 v28, v[132:135] offset:{RED2+16}")
e(f"  ds_write_b128 v28, v[136:139] offset:{RED2+2048}")
e(f"  ds_write_b128 v28, v[140:143] offset:{RED2+2048+16}")
e("  s_waitcnt lgkmcnt(0)")
e("  s_barrier")
for k in range(4):
    for w in range(4):
        e(f"  ds_read_b32 v{32+4*k+w}, v30 offset:{RED2+4096*w+1024*k}")
e(f"  s_mov_b32 s39, {ACC_OFF+4096}")
e("  s_waitcnt lgkmcnt(0)")
for k in range(4):
    e(f"  v_add_f32 v{32+4*k}, v{32+4*k}, v{33+4*k}")
    e(f"  v_add_f32 v{34+4*k}, v{34+4*k}, v{35+4*k}")
    e(f"  v_add_f32 v{32+4*k}, v{32+4*k}, v{34+4*k}")
    e(f"  buffer_atomic_add_f32 v{32+4*k}, v30, s[20:23], s39 offen offset:{1024*k} sc0")
e("  s_waitcnt vmcnt(0)")
e("B_arrive:")
FLAG = 36864
e("  s_barrier")
e("  v_cmp_eq_u32 vcc, 0, v0")
e("  s_and_saveexec_b64 s[42:43], vcc")
e("  s_cbranch_execz B_a1")
e("  s_waitcnt lgkmcnt(0)")
srd(24, 50, 256)
e("  v_mov_b32 v3, 0")
e("  v_mov_b32 v4, 1")
e("  buffer_atomic_add v4, v3, s[24:27], 0 offen sc0")
e("  s_waitcnt vmcnt(0)")
e(f"  ds_write_b32 v3, v4 offset:{FLAG}")
e("  s_waitcnt lgkmcnt(0)")
e("B_a1:")
e("  s_mov_b64 exec, s[42:43]")
e("  v_mov_b32 v3, 0")
e("  s_barrier")
e(f"  ds_read_b32 v4, v3 offset:{FLAG}")
e("  s_waitcnt lgkmcnt(0)")
e("  v_readfirstlane_b32 s44, v4")
e("  s_cmp_lg_u32 s44, 170")
e("  s_cbranch_scc1 B_end")
srd(12, 4, 2048)
srd(16, 48, 2048)
e("  v_lshlrev_b32 v30, 2, v0")
e("  v_lshlrev_b32 v31, 1, v0")
e(f"  s_mov_b32 s38, {ACC_OFF}")
e(f"  s_mov_b32 s39, {ACC_OFF+4096}")
for k in range(4):
    e(f"  v_mov_b32 v{32+k}, 0")
    e(f"  v_mov_b32 v{36+k}, 0")
for k in range(4):
    e(f"  buffer_atomic_add_f32 v{32+k}, v30, s[20:23], s38 offen offset:{1024*k} sc0")
    e(f"  buffer_atomic_add_f32 v{36+k}, v30, s[20:23], s39 offen offset:{1024*k} sc0")
    e(f"  buffer_load_ushort v{40+k}, v31, s[12:15], 0 offen offset:{512*k}")
e("  s_waitcnt vmcnt(0)")
for k in range(4):
    s_, y_, x_, t_ = 32+k, 36+k, 40+k, 44
    bf16r(s_, s_)
    bf16r(y_, y_)
    e(f"  v_mul_f32 v{t_}, {f32(-1.4426950408889634)}, v{y_}")
    e(f"  v_exp_f32 v{t_}, v{t_}")
    e("  s_nop 0")
    e(f"  v_add_f32 v{t_}, 1.0, v{t_}")
    e(f"  v_rcp_f32 v{t_}, v{t_}")
    e("  s_nop 0")
    e(f"  v_mul_f32 v{t_}, v{t_}, v{y_}")
    bf16r(t_, t_)
    e(f"  v_mul_f32 v{t_}, v{t_}, v{s_}")
    bf16r(t_, t_)
    e(f"  v_lshlrev_b32 v{x_}, 16, v{x_}")
    e(f"  v_add_f32 v{t_}, v{t_}, v{x_}")
    e(f"  v_cvt_pk_bf16_f32 v{x_}, v{t_}, v{t_}")
    e(f"  buffer_store_short v{x_}, v31, s[16:19], 0 offen offset:{512*k}")
e("B_end:")
e("  s_endpgm")

e('.section .rodata,"a"')
for (k, nv, ns) in (("attn_kernel", 128, 72), ("proj_kernel", 168, 64)):
    e(".p2align 6")
    e(f".amdhsa_kernel {k}")
    e(f"  .amdhsa_next_free_vgpr {nv}")
    e(f"  .amdhsa_next_free_sgpr {ns}")
    e(f"  .amdhsa_accum_offset {nv}")
    e("  .amdhsa_group_segment_fixed_size 0")
    e("  .amdhsa_kernarg_size 96")
    e("  .amdhsa_user_sgpr_count 2")
    e("  .amdhsa_user_sgpr_kernarg_segment_ptr 1")
    e("  .amdhsa_system_sgpr_workgroup_id_x 1")
    e(".end_amdhsa_kernel")

dst = sys.argv[1] if len(sys.argv) > 1 else f"cdna_kernels/{NAME}.s"
open(dst, "w").write("\n".join(out) + "\n")
```

```python
import sys, struct

NAME = "recurrent_scan__mha_block_cached__geglu_ffn__decode"
out = []
def e(s=""):
    out.append(s)
def f32(x):
    return "0x%08x" % struct.unpack("<I", struct.pack("<f", x))[0]

LOG2E = f32(1.4426950408889634)
SCALE = f32(128 ** -0.5)

import os
NT = os.environ.get("NT", "nt")
NTS = (" " + NT) if NT else ""
WNT = os.environ.get("WNT", "nt")
WTS = (" " + WNT) if WNT else ""
PNT = os.environ.get("PNT", "")
PTS = (" " + PNT) if PNT else ""
SNT = os.environ.get("SNT", "")
STS = (" " + SNT) if SNT else ""

PART_STRIDE = 1024
ACC_OFF = 256 * 1024
WS_SIZE = 0x40000000
GU_WS = ACC_OFF + 8192

def srd(d, p, size):
    e(f"  s_mov_b32 s{d}, s{p}")
    e(f"  s_and_b32 s{d+1}, s{p+1}, 0xffff")
    e(f"  s_mov_b32 s{d+2}, {size}")
    e(f"  s_mov_b32 s{d+3}, 0x00020000")

def row_allreduce(op, v):
    for sh in (8, 4, 2, 1):
        e("  s_nop 1")
        e(f"  {op}_dpp v{v}, v{v}, v{v} row_ror:{sh} row_mask:0xf bank_mask:0xf")

def wave_from_rows(op, v, s0):
    e("  s_nop 1")
    for k in range(4):
        e(f"  v_readlane_b32 s{s0+k}, v{v}, {16*k}")
    e("  s_nop 1")
    e(f"  v_mov_b32 v{v}, s{s0}")
    for k in range(1, 4):
        e(f"  {op} v{v}, s{s0+k}, v{v}")

def bf16r(dst, src):
    e(f"  v_cvt_pk_bf16_f32 v{dst}, v{src}, v{src}")
    e(f"  v_lshlrev_b32 v{dst}, 16, v{dst}")

def layernorm(xr, xf, t, s0):
    for j in range(4):
        e(f"  v_lshlrev_b32 v{xf+2*j}, 16, v{xr+j}")
        e(f"  v_and_b32 v{xf+2*j+1}, 0xffff0000, v{xr+j}")
    e(f"  v_add_f32 v{t}, v{xf}, v{xf+1}")
    for j in range(2, 8):
        e(f"  v_add_f32 v{t}, v{t}, v{xf+j}")
    row_allreduce("v_add_f32", t)
    wave_from_rows("v_add_f32", t, s0)
    e(f"  v_mul_f32 v{t}, {f32(1.0/512)}, v{t}")
    e(f"  v_sub_f32 v{t+2}, v{xf}, v{t}")
    e(f"  v_mul_f32 v{t+1}, v{t+2}, v{t+2}")
    for j in range(1, 8):
        e(f"  v_sub_f32 v{t+2}, v{xf+j}, v{t}")
        e(f"  v_fmac_f32 v{t+1}, v{t+2}, v{t+2}")
    row_allreduce("v_add_f32", t+1)
    wave_from_rows("v_add_f32", t+1, s0)
    e(f"  v_mul_f32 v{t+1}, {f32(1.0/512)}, v{t+1}")
    bf16r(t, t)
    bf16r(t+1, t+1)
    e(f"  v_add_f32 v{t+1}, {f32(1e-5)}, v{t+1}")
    bf16r(t+1, t+1)
    e(f"  v_sqrt_f32 v{t+1}, v{t+1}")
    e("  s_nop 0")
    bf16r(t+1, t+1)
    e(f"  v_rcp_f32 v{t+2}, v{t+1}")
    e("  s_nop 0")
    for j in range(8):
        e(f"  v_sub_f32 v{t+3}, v{xf+j}, v{t}")
        bf16r(t+3, t+3)
        e(f"  v_mul_f32 v{t+4}, v{t+3}, v{t+2}")
        e(f"  v_fma_f32 v{t+5}, -v{t+4}, v{t+1}, v{t+3}")
        e(f"  v_fma_f32 v{t+4}, v{t+5}, v{t+2}, v{t+4}")
        bf16r(xf+j, t+4)

def gelu_mul(g, u, d):
    e(f"  v_mul_f32 v{d}, v{g}, v{g}")
    e(f"  v_mul_f32 v{d}, v{d}, v{g}")
    e(f"  v_mul_f32 v{d}, {f32(0.044715)}, v{d}")
    e(f"  v_add_f32 v{d}, v{d}, v{g}")
    e(f"  v_mul_f32 v{d}, {f32(2*0.7978845608028654*1.4426950408889634)}, v{d}")
    e(f"  v_exp_f32 v{d}, v{d}")
    e("  s_nop 0")
    e(f"  v_add_f32 v{d}, 1.0, v{d}")
    e(f"  v_rcp_f32 v{d}, v{d}")
    e("  s_nop 0")
    e(f"  v_sub_f32 v{d}, 1.0, v{d}")
    e(f"  v_mul_f32 v{d}, v{d}, v{g}")
    bf16r(d, d)
    e(f"  v_mul_f32 v{d}, v{d}, v{u}")
    bf16r(d, d)

NWG_A = 256
e(f"; @launch kernel=attn_kernel grid=({NWG_A},1,1) block=(1024,1,1) lds=77824")
e("; @launch kernel=proj_kernel grid=(171,1,1) block=(256,1,1) lds=40960")
e('.amdgcn_target "amdgcn-amd-amdhsa--gfx950"')
e(".text")

QRED = 0
Q2 = 32768
ML = 36864
XN = 37888
FRED = 43008

K0, V0, WQ0 = 32, 64, 96
Q, ACC, M, L, S = 4, 8, 16, 17, 18
PLO, PHI, T = 96, 104, 112
VO0, VO1 = 2, 3
NBLK = 8

e(".globl attn_kernel\n.p2align 8\n.type attn_kernel,@function\nattn_kernel:")
e(f"  s_cmp_ge_u32 s2, {NWG_A}")
e("  s_cbranch_scc1 A_end")
e("  s_load_dwordx8 s[4:11], s[0:1], 0")
e("  s_load_dwordx2 s[12:13], s[0:1], 88")
e("  s_load_dwordx4 s[52:55], s[0:1], 48")
e("  s_load_dwordx2 s[70:71], s[0:1], 32")
e("  s_load_dwordx2 s[72:73], s[0:1], 64")
e("  v_and_b32 v1, 63, v0")
e("  v_lshrrev_b32 v26, 6, v0")
XMAP = int(os.environ.get("XMAP", "1"))
if XMAP:
    e("  s_and_b32 s74, s2, 7")
    e("  s_lshr_b32 s75, s2, 3")
    e("  s_and_b32 s37, s75, 3")
    e("  s_lshl_b32 s37, s37, 3")
    e("  s_add_u32 s74, s74, s37")
    e("  s_lshr_b32 s75, s75, 2")
    e("  s_lshr_b32 s37, s75, 2")
    e("  s_lshl_b32 s37, s37, 5")
    e("  s_add_u32 s37, s37, s74")
    e("  s_and_b32 s75, s75, 3")
    e("  s_lshl_b32 s74, s37, 2")
    e("  s_add_u32 s74, s74, s75")
else:
    e("  s_mov_b32 s74, s2")
e("  s_lshr_b32 s37, s74, 2")
e("  s_lshr_b32 s38, s37, 5")
e("  s_and_b32 s39, s37, 31")
if int(os.environ.get("ILV", "1")) == 2:
    e("  s_lshl_b32 s36, s37, 22")
    e("  s_and_b32 s40, s2, 3")
    e("  s_lshl_b32 s40, s40, 17")
    e("  s_add_u32 s36, s36, s40")
else:
    e("  s_lshl_b32 s36, s74, 20")
e("  s_lshl_b32 s40, s38, 10")
e("  s_lshl_b32 s41, s39, 8")
e("  v_lshlrev_b32 v27, 4, v1")
ILV = int(os.environ.get("ILV", "1"))
STEP = {0: 8192, 1: 131072, 2: 524288}[ILV]
e(f"  v_lshl_add_u32 v{VO0}, v26, {13 if ILV else 16}, v27")
e(f"  v_add_u32 v{VO1}, 4096, v{VO0}")
e("  v_lshrrev_b32 v28, 4, v0")
e("  v_and_b32 v29, 15, v0")
e("  v_lshlrev_b32 v29, 4, v29")
e("  v_lshl_add_u32 v28, v28, 13, v29")
e("  s_waitcnt lgkmcnt(0)")
srd(16, 6, 0x10000000)
srd(20, 8, 0x10000000)
srd(24, 10, 0x400000)
srd(28, 4, 2048)
srd(32, 12, WS_SIZE)
e("  s_cmp_lt_u32 s2, 176")
e("  s_cselect_b32 s51, %d, 0" % (0 if os.environ.get("NOFFN") else 1409024))
e("  s_mov_b32 s56, s52\n  s_and_b32 s57, s53, 0xffff\n  s_mov_b32 s58, s51\n  s_mov_b32 s59, 0x00020000")
e("  s_mov_b32 s60, s54\n  s_and_b32 s61, s55, 0xffff\n  s_mov_b32 s62, s51\n  s_mov_b32 s63, 0x00020000")
e("  s_and_b32 s65, s2, 7")
e("  s_lshr_b32 s66, s2, 3")
e(f"  s_mul_i32 s49, s65, {64*2752}")
e("  s_lshl_b32 s50, s66, 7")
e("  s_add_u32 s49, s49, s50")
e("  v_and_b32 v29, 511, v0")
e("  v_lshrrev_b32 v29, 3, v29")
e("  s_movk_i32 s48, 2752")
e("  v_mul_lo_u32 v29, v29, s48")
e("  v_and_b32 v30, 7, v0")
e("  v_lshl_add_u32 v29, v30, 4, v29")
e("  v_readfirstlane_b32 s64, v26")

def kv_loads(base, rsrc, lo=0, hi=8):
    for i in range(lo, hi):
        vo = VO0 if i < 4 else VO1
        e(f"  buffer_load_dwordx4 v[{base+4*i}:{base+4*i+3}], v{vo}, s[{rsrc}:{rsrc+3}], s36 offen offset:{1024*(i%4)}{NTS}")

e(f"  buffer_load_dwordx4 v[16:19], v27, s[28:31], 0 offen{PTS}")
e(f"  buffer_load_dwordx4 v[4:7], v27, s[28:31], 0 offen offset:1024{PTS}")
for i in range(8):
    e(f"  buffer_load_dwordx4 v[{WQ0+4*i}:{WQ0+4*i+3}], v28, s[24:27], s41 offen{WTS}")
    if i < 7:
        e("  s_add_u32 s41, s41, 0x80000")
e("  s_cmp_ge_u32 s64, 8")
e("  s_cbranch_scc1 A_ldu")
e(f"  buffer_load_dwordx4 v[92:95], v29, s[56:59], s49 offen{WTS}")
e("  s_branch A_ldd")
e("A_ldu:")
e(f"  buffer_load_dwordx4 v[92:95], v29, s[60:63], s49 offen{WTS}")
e("A_ldd:")
ROT = int(os.environ.get("ROT", "0"))
if ROT:
    e("  s_mov_b32 s68, s36")
    e(f"  s_lshr_b32 s67, s2, {ROT-1}")
    e("  s_and_b32 s67, s67, 7")
    e("  s_lshl_b32 s36, s67, 17")
    e("  s_add_u32 s36, s36, s68")
    kv_loads(K0, 16)
    e("  s_add_u32 s36, s67, 1")
    e("  s_and_b32 s36, s36, 7")
    e("  s_lshl_b32 s36, s36, 17")
    e("  s_add_u32 s36, s36, s68")
    kv_loads(V0, 16, 0, 7)
else:
    kv_loads(K0, 16)
    e(f"  s_add_u32 s36, s36, {STEP}")
    kv_loads(V0, 16, 0, 7)
e("  s_cmp_lg_u32 s2, 0")
e("  s_cbranch_scc1 A_nozero")
e("  v_cmp_gt_u32 vcc, 512, v0")
e("  s_and_saveexec_b64 s[42:43], vcc")
e("  s_cbranch_execz A_zrest")
e("  v_mov_b32 v20, 0\n  v_mov_b32 v21, 0\n  v_mov_b32 v22, 0\n  v_mov_b32 v23, 0")
e("  v_lshlrev_b32 v24, 4, v0")
e(f"  v_add_u32 v24, {ACC_OFF}, v24")
e(f"  buffer_store_dwordx4 v[20:23], v24, s[32:35], 0 offen{STS}")
e("A_zrest:")
e("  s_mov_b64 exec, s[42:43]")
e("  s_nop 1")
e("A_nozero:")
e("  s_waitcnt vmcnt(24)")
layernorm(16, 8, 20, 44)
e("  v_lshlrev_b32 v30, 5, v1")
e(f"  ds_write_b128 v30, v[8:11] offset:{XN}")
e(f"  ds_write_b128 v30, v[12:15] offset:{XN+16}")
layernorm(4, 8, 20, 44)
e(f"  ds_write_b128 v30, v[8:11] offset:{XN+2048}")
e(f"  ds_write_b128 v30, v[12:15] offset:{XN+2048+16}")
e("  v_lshrrev_b32 v31, 4, v0")
e("  v_lshlrev_b32 v31, 2, v31")
e("  s_lshl_b32 s40, s38, 11")
e("  v_add_u32 v31, s40, v31")
e("  v_and_b32 v30, 511, v0")
e("  v_lshrrev_b32 v30, 3, v30")
e("  s_lshl_b32 s40, s65, 8")
e("  v_lshl_add_u32 v30, v30, 2, s40")
e("  s_waitcnt lgkmcnt(0)")
for i in range(8):
    e(f"  ds_read_b32 v{16+i}, v31 offset:{XN+256*i}")
e(f"  ds_read_b32 v27, v30 offset:{XN}")
e(f"  ds_read_b32 v28, v30 offset:{XN+2048}")
for j in range(8):
    e(f"  v_mov_b32 v{8+j}, 0")
e("  s_waitcnt vmcnt(16) lgkmcnt(0)")
for i in range(8):
    for j in range(4):
        e(f"  v_lshlrev_b32 v24, 16, v{WQ0+4*i+j}")
        e(f"  v_and_b32 v25, 0xffff0000, v{WQ0+4*i+j}")
        e(f"  v_fmac_f32 v{8+2*j}, v24, v{16+i}")
        e(f"  v_fmac_f32 v{8+2*j+1}, v25, v{16+i}")
e("  v_lshlrev_b32 v30, 5, v0")
e(f"  ds_write_b128 v30, v[8:11] offset:{QRED}")
e(f"  ds_write_b128 v30, v[12:15] offset:{QRED+16}")
e("  s_waitcnt vmcnt(15)")
for j in range(4):
    e(f"  v_lshlrev_b32 v{112+2*j}, 16, v{92+j}")
    e(f"  v_and_b32 v{113+2*j}, 0xffff0000, v{92+j}")
for j in range(8):
    e(f"  v_mul_f32 v{96+j}, v{112+j}, v27")
    e(f"  v_mul_f32 v{104+j}, v{112+j}, v28")
kv_loads(V0, 16, 7, 8)
e(f"  s_sub_u32 s36, s36, {STEP}")
for j in range(16):
    e(f"  v_add_f32_dpp v{96+j}, v{96+j}, v{96+j} row_ror:8 row_mask:0xf bank_mask:0xf")
e("  v_lshrrev_b32 v24, 4, v0")
e("  v_lshlrev_b32 v24, 9, v24")
e("  v_and_b32 v25, 7, v0")
e("  v_lshl_add_u32 v24, v25, 5, v24")
e(f"  ds_write_b128 v24, v[96:99] offset:{FRED}")
e(f"  ds_write_b128 v24, v[100:103] offset:{FRED+16}")
e(f"  ds_write_b128 v24, v[104:107] offset:{FRED+256}")
e(f"  ds_write_b128 v24, v[108:111] offset:{FRED+256+16}")
e("  v_and_b32 v24, 127, v0")
e("  v_lshrrev_b32 v25, 7, v0")
e("  v_lshlrev_b32 v24, 2, v24")
e("  v_lshl_add_u32 v31, v25, 12, v24")
e("  s_waitcnt lgkmcnt(0)")
e("  s_barrier")
for r in range(8):
    e(f"  ds_read_b32 v{16+r}, v31 offset:{QRED+512*r}")
e("  v_lshlrev_b32 v29, 2, v0")
e("  s_waitcnt lgkmcnt(0)")
for r in range(1, 8):
    e(f"  v_add_f32 v16, v16, v{16+r}")
e(f"  ds_write_b32 v29, v16 offset:{Q2}")
e("  s_cmp_ge_u32 s64, 4")
e("  s_cbranch_scc1 A_nf1")
e("  s_cmp_ge_u32 s2, 176")
e("  s_cbranch_scc1 A_nf1")
e("  v_lshrrev_b32 v24, 7, v0")
e("  v_and_b32 v25, 127, v0")
e("  v_lshlrev_b32 v24, 14, v24")
e("  v_lshl_add_u32 v24, v25, 2, v24")
for p in range(32):
    e(f"  ds_read_b32 v{96+p}, v24 offset:{FRED+512*p}")
e("  s_lshl_b32 s48, s65, 2")
e("  s_add_u32 s48, s48, s64")
e("  s_mul_i32 s48, s48, 5632")
e("  s_lshl_b32 s49, s66, 8")
e("  s_add_u32 s48, s48, s49")
e(f"  s_add_u32 s48, s48, {GU_WS}")
e("  v_lshlrev_b32 v25, 2, v1")
e("  s_waitcnt lgkmcnt(0)")
for p in range(1, 32):
    e(f"  v_add_f32 v96, v96, v{96+p}")
e(f"  buffer_store_dword v96, v25, s[32:35], s48 offen{STS}")
e("A_nf1:")
e("  v_and_b32 v24, 15, v1")
e("  v_lshlrev_b32 v24, 5, v24")
e("  s_waitcnt lgkmcnt(0)")
e("  s_barrier")
for jj in range(8):
    e(f"  ds_read_b128 v[{WQ0+8*(jj%4)}:{WQ0+8*(jj%4)+3}], v24 offset:{Q2+512*jj}")
    e(f"  ds_read_b128 v[{WQ0+8*(jj%4)+4}:{WQ0+8*(jj%4)+7}], v24 offset:{Q2+512*jj+16}")
    if jj % 4 == 3:
        e("  s_waitcnt lgkmcnt(0)")
        for k in range(4):
            for j in range(8):
                if jj == 3 and k == 0:
                    e(f"  v_mov_b32 v{8+j}, v{WQ0+j}")
                else:
                    e(f"  v_add_f32 v{8+j}, v{8+j}, v{WQ0+8*k+j}")
for j in range(4):
    e(f"  v_cvt_pk_bf16_f32 v{Q+j}, v{8+2*j}, v{8+2*j+1}")
for j in range(8):
    e(f"  v_mov_b32 v{ACC+j}, 0")
e(f"  v_mov_b32 v{M}, 0xff800000")
e(f"  v_mov_b32 v{L}, 0")
e(f"  s_mov_b32 s44, {SCALE}")
e(f"  s_mov_b32 s45, {LOG2E}")
e("  s_mov_b32 s46, 0")

PURE = int(os.environ.get("PURE", "0"))
def block(last):
    if PURE:
        e("  s_waitcnt vmcnt(8)")
        e(f"  v_add_f32 v{ACC}, v{K0}, v{ACC}")
        if not last:
            kv_loads(K0, 16)
        e("  s_waitcnt vmcnt(0)" if last else "  s_waitcnt vmcnt(8)")
        e(f"  v_add_f32 v{ACC}, v{V0}, v{ACC}")
        if not last:
            kv_loads(V0, 20)
            e(f"  s_add_u32 s36, s36, {STEP}")
        return
    e("  s_waitcnt vmcnt(8)")
    for t in range(4):
        for i in range(8):
            c = "0" if t == 0 else f"v{S+i}"
            e(f"  v_dot2_f32_bf16 v{S+i}, v{K0+4*i+t}, v{Q+t}, {c}")
    if not last:
        kv_loads(K0, 16)
    for sh in (8, 4, 2, 1):
        for i in range(8):
            e(f"  v_add_f32_dpp v{S+i}, v{S+i}, v{S+i} row_ror:{sh} row_mask:0xf bank_mask:0xf")
    for rnd in range(2):
        for p in range(4):
            e(f"  v_cvt_pk_bf16_f32 v{T+p}, v{S+2*p}, v{S+2*p+1}")
        for p in range(4):
            e(f"  v_lshlrev_b32 v{S+2*p}, 16, v{T+p}")
            e(f"  v_and_b32 v{S+2*p+1}, 0xffff0000, v{T+p}")
        if rnd == 0:
            for i in range(8):
                e(f"  v_mul_f32 v{S+i}, s44, v{S+i}")
    MN, A = T+4, T+5
    e(f"  v_max3_f32 v{MN}, v{M}, v{S}, v{S+1}")
    for p in range(1, 4):
        e(f"  v_max3_f32 v{MN}, v{MN}, v{S+2*p}, v{S+2*p+1}")
    e(f"  v_sub_f32 v{A}, v{M}, v{MN}")
    for i in range(8):
        e(f"  v_sub_f32 v{S+i}, v{S+i}, v{MN}")
    e(f"  v_mul_f32 v{A}, s45, v{A}")
    for i in range(8):
        e(f"  v_mul_f32 v{S+i}, s45, v{S+i}")
    e(f"  v_exp_f32 v{A}, v{A}")
    for i in range(8):
        e(f"  v_exp_f32 v{S+i}, v{S+i}")
    e(f"  v_mov_b32 v{M}, v{MN}")
    for j in range(8):
        e(f"  v_mul_f32 v{ACC+j}, v{ACC+j}, v{A}")
    for p in range(4):
        e(f"  v_add_f32 v{T+p}, v{S+2*p}, v{S+2*p+1}")
    e(f"  v_add_f32 v{T}, v{T}, v{T+1}")
    e(f"  v_add_f32 v{T+2}, v{T+2}, v{T+3}")
    e(f"  v_add_f32 v{T}, v{T}, v{T+2}")
    e(f"  v_fma_f32 v{L}, v{L}, v{A}, v{T}")
    for i in range(8):
        e(f"  v_cvt_pk_bf16_f32 v{PLO+i}, v{S+i}, 0")
        e(f"  v_cvt_pk_bf16_f32 v{PHI+i}, 0, v{S+i}")
    e("  s_waitcnt vmcnt(0)" if last else "  s_waitcnt vmcnt(8)")
    for i in range(8):
        for t in range(4):
            e(f"  v_dot2_f32_bf16 v{ACC+2*t}, v{V0+4*i+t}, v{PLO+i}, v{ACC+2*t}")
            e(f"  v_dot2_f32_bf16 v{ACC+2*t+1}, v{V0+4*i+t}, v{PHI+i}, v{ACC+2*t+1}")
    if not last:
        kv_loads(V0, 20)
        e(f"  s_add_u32 s36, s36, {STEP}")

SC = 96
PFN = int(os.environ.get("PFN", "99"))
TT = 26
def issue(n):
    buf = K0 if n % 2 == 0 else V0
    r = 16 if n < 8 else 20
    if ROT:
        e(f"  s_add_u32 s46, s67, {n%8}")
        e("  s_and_b32 s46, s46, 7")
        e("  s_lshl_b32 s46, s46, 17")
        e("  s_add_u32 s46, s46, s68")
    else:
        e(f"  s_add_u32 s46, s36, {STEP*(n%8)}")
    for i in range(8):
        vo = VO0 if i < 4 else VO1
        if PURE == 3:
            if i % 4 == 0:
                e(f"  s_add_u32 m0, s69, {4096*(i//4)}")
                e("  s_nop 0")
            e(f"  buffer_load_dwordx4 v{vo}, s[{r}:{r+3}], s46 offen offset:{1024*(i%4)}{NTS} lds")
        else:
            e(f"  buffer_load_dwordx4 v[{buf+4*i}:{buf+4*i+3}], v{vo}, s[{r}:{r+3}], s46 offen offset:{1024*(i%4)}{NTS}")
if PURE == 3:
    e("  s_barrier")
    e("  s_lshl_b32 s69, s64, 13")
for n in range(16):
    buf = K0 if n % 2 == 0 else V0
    e("  s_waitcnt vmcnt(0)" if n == 15 else "  s_waitcnt vmcnt(8)")
    if PURE:
        e(f"  v_add_f32 v{ACC}, v{buf}, v{ACC}")
        if n + 2 < 16:
            issue(n + 2)
        continue
    if n < 8:
        for t in range(4):
            for i in range(8):
                c = "0" if t == 0 else f"v{S+i}"
                e(f"  v_dot2_f32_bf16 v{S+i}, v{buf+4*i+t}, v{Q+t}, {c}")
        issue(n + 2)
        for sh in (8, 4, 2, 1):
            for i in range(8):
                e(f"  v_add_f32_dpp v{S+i}, v{S+i}, v{S+i} row_ror:{sh} row_mask:0xf bank_mask:0xf")
        for p in range(4):
            e(f"  v_cvt_pk_bf16_f32 v{TT+p}, v{S+2*p}, v{S+2*p+1}")
        for p in range(4):
            e(f"  v_lshlrev_b32 v{S+2*p}, 16, v{TT+p}")
            e(f"  v_and_b32 v{S+2*p+1}, 0xffff0000, v{TT+p}")
        for i in range(8):
            e(f"  v_mul_f32 v{S+i}, s44, v{S+i}")
        for p in range(4):
            e(f"  v_cvt_pk_bf16_f32 v{SC+4*n+p}, v{S+2*p}, v{S+2*p+1}")
            e(f"  v_max3_f32 v{M}, v{M}, v{S+2*p}, v{S+2*p+1}")
        if n == 7:
            bf16r(M, M)
    else:
        k = n - 8
        for p in range(4):
            e(f"  v_lshlrev_b32 v{S+2*p}, 16, v{SC+4*k+p}")
            e(f"  v_and_b32 v{S+2*p+1}, 0xffff0000, v{SC+4*k+p}")
        for i in range(8):
            e(f"  v_sub_f32 v{S+i}, v{S+i}, v{M}")
        for i in range(8):
            e(f"  v_mul_f32 v{S+i}, s45, v{S+i}")
        for i in range(8):
            e(f"  v_exp_f32 v{S+i}, v{S+i}")
        for p in range(4):
            e(f"  v_add_f32 v{TT+p}, v{S+2*p}, v{S+2*p+1}")
        e(f"  v_add_f32 v{TT}, v{TT}, v{TT+1}")
        e(f"  v_add_f32 v{TT+2}, v{TT+2}, v{TT+3}")
        e(f"  v_add_f32 v{TT}, v{TT}, v{TT+2}")
        e(f"  v_add_f32 v{L}, v{L}, v{TT}")
        for i in range(8):
            lo, hi = TT + 2*(i % 2), TT + 2*(i % 2) + 1
            e(f"  v_cvt_pk_bf16_f32 v{lo}, v{S+i}, 0")
            e(f"  v_cvt_pk_bf16_f32 v{hi}, 0, v{S+i}")
            for t in range(4):
                e(f"  v_dot2_f32_bf16 v{ACC+2*t}, v{buf+4*i+t}, v{lo}, v{ACC+2*t}")
                e(f"  v_dot2_f32_bf16 v{ACC+2*t+1}, v{buf+4*i+t}, v{hi}, v{ACC+2*t+1}")
        if n == PFN:
            e("  s_lshl_b32 s47, s2, 4")
            e("  s_add_u32 s47, s47, s64")
            e("  s_lshl_b32 s76, s47, 10")
            e("  s_add_u32 s84, s70, s76")
            e("  s_addc_u32 s85, s71, 0")
            for k in range(8):
                e(f"  s_load_dword s{88+k}, s[84:85], {128*k}")
            e("  s_cmp_ge_u32 s47, 1376")
            e("  s_cbranch_scc1 A_nopf")
            e("  s_add_u32 s86, s72, s76")
            e("  s_addc_u32 s87, s73, 0")
            for k in range(8):
                e(f"  s_load_dword s{88+k}, s[86:87], {128*k}")
            e("A_nopf:")
        if n + 2 < 16:
            issue(n + 2)
e("  v_lshrrev_b32 v26, 6, v0")
e("  v_and_b32 v24, 127, v0")
e("  v_lshrrev_b32 v25, 7, v0")
e("  v_lshlrev_b32 v24, 2, v24")
e("  v_lshl_add_u32 v31, v25, 12, v24")
e("A_epi:")
e("  s_nop 3")
e(f"  v_mov_b32 v20, v{M}")
wave_from_rows("v_max_f32", 20, 48)
e(f"  v_sub_f32 v21, v{M}, v20")
e("  v_mul_f32 v21, s45, v21")
e("  v_exp_f32 v21, v21")
e("  s_nop 0")
e(f"  v_mul_f32 v{L}, v{L}, v21")
for j in range(8):
    e(f"  v_mul_f32 v{ACC+j}, v{ACC+j}, v21")
wave_from_rows("v_add_f32", L, 48)
e("  v_lshlrev_b32 v30, 5, v0")
e(f"  ds_write_b128 v30, v[{ACC}:{ACC+3}] offset:{QRED}")
e(f"  ds_write_b128 v30, v[{ACC+4}:{ACC+7}] offset:{QRED+16}")
e("  v_lshlrev_b32 v29, 2, v26")
e(f"  ds_write_b32 v29, v20 offset:{ML}")
e(f"  ds_write_b32 v29, v{L} offset:{ML+64}")
e("  v_mov_b32 v24, 0")
e("  v_lshrrev_b32 v25, 7, v0")
e("  v_lshlrev_b32 v28, 3, v25")
e("  s_waitcnt lgkmcnt(0)")
e("  s_barrier")
for k in range(4):
    e(f"  ds_read_b128 v[{32+4*k}:{35+4*k}], v24 offset:{ML+16*k}")
e(f"  ds_read_b64 v[48:49], v28 offset:{ML}")
for r in range(8):
    e(f"  ds_read_b32 v{50+r}, v31 offset:{QRED+512*r}")
e("  s_waitcnt lgkmcnt(0)")
e("  v_max3_f32 v60, v32, v33, v34")
for k in range(35, 47, 2):
    e(f"  v_max3_f32 v60, v60, v{k}, v{k+1}")
e("  v_max_f32 v60, v60, v47")
e("  v_sub_f32 v48, v48, v60\n  v_sub_f32 v49, v49, v60")
e("  v_mul_f32 v48, s45, v48\n  v_mul_f32 v49, s45, v49")
e("  v_exp_f32 v48, v48\n  v_exp_f32 v49, v49")
e("  v_add_f32 v50, v50, v51\n  v_add_f32 v52, v52, v53\n  v_add_f32 v54, v54, v55\n  v_add_f32 v56, v56, v57")
e("  v_add_f32 v50, v50, v52\n  v_add_f32 v54, v54, v56")
e("  v_mul_f32 v50, v50, v48")
e("  v_fmac_f32 v50, v54, v49")
e("  v_lshlrev_b32 v29, 2, v0")
e(f"  ds_write_b32 v29, v50 offset:{Q2}")
e("  s_waitcnt lgkmcnt(0)")
e("  s_barrier")
e("  v_cmp_gt_u32 vcc, 128, v0")
e("  s_and_saveexec_b64 s[42:43], vcc")
e("  s_cbranch_execz A_end")
for r in range(8):
    e(f"  ds_read_b32 v{50+r}, v29 offset:{Q2+512*r}")
for k in range(4):
    e(f"  ds_read_b128 v[{64+4*k}:{67+4*k}], v24 offset:{ML+64+16*k}")
e("  s_waitcnt lgkmcnt(0)")
for r in range(1, 8):
    e(f"  v_add_f32 v50, v50, v{50+r}")
e("  v_mov_b32 v61, 0")
for k in range(16):
    e(f"  v_sub_f32 v{32+k}, v{32+k}, v60")
    e(f"  v_mul_f32 v{32+k}, s45, v{32+k}")
    e(f"  v_exp_f32 v{32+k}, v{32+k}")
    e("  s_nop 0")
    e(f"  v_fmac_f32 v61, v{32+k}, v{64+k}")
e("  s_lshl_b32 s47, s74, 10")
e(f"  buffer_store_dword v50, v29, s[32:35], s47 offen{STS}")
e("  v_cmp_eq_u32 vcc, 0, v0")
e("  s_and_saveexec_b64 s[42:43], vcc")
e("  s_cbranch_execz A_end")
e(f"  buffer_store_dwordx2 v[60:61], v24, s[32:35], s47 offen offset:512{STS}")
e("A_end:")
e("  s_endpgm")

e(".globl proj_kernel\n.p2align 8\n.type proj_kernel,@function\nproj_kernel:")
e("  s_cmp_ge_u32 s2, 171")
e("  s_cbranch_scc1 B_end")
e("  s_load_dwordx2 s[4:5], s[0:1], 0")
e("  s_load_dwordx2 s[6:7], s[0:1], 32")
e("  s_load_dwordx4 s[8:11], s[0:1], 48")
e("  s_load_dwordx2 s[12:13], s[0:1], 64")
e("  s_load_dwordx2 s[14:15], s[0:1], 88")
e("  s_load_dwordx4 s[48:51], s[0:1], 72")
e("  v_and_b32 v1, 63, v0")
e("  v_lshrrev_b32 v2, 6, v0")
e(f"  s_mov_b32 s45, {LOG2E}")
e("  s_waitcnt lgkmcnt(0)")
srd(20, 14, WS_SIZE)
e("  s_cmp_ge_u32 s2, 128")
e("  s_cbranch_scc1 B_ffn")
O_OFF, RED = 0, 2048
srd(16, 6, 0x400000)
e("  s_lshr_b32 s36, s2, 3")
e("  s_and_b32 s37, s2, 7")
e("  s_lshl_b32 s38, s36, 18")
e("  s_lshl_b32 s39, s37, 7")
e("  s_add_u32 s38, s38, s39")
e("  s_lshl_b32 s40, s36, 13")
e("  v_lshrrev_b32 v3, 1, v2")
e("  v_and_b32 v4, 1, v2")
e("  v_lshlrev_b32 v5, 17, v3")
e("  v_lshl_add_u32 v5, v4, 12, v5")
e("  v_lshl_add_u32 v6, v1, 3, v5")
for s in range(4):
    e(f"  buffer_load_dwordx2 v[{64+2*s}:{65+2*s}], v6, s[20:23], s40 offen offset:{1024*s}{PTS}")
    e(f"  buffer_load_dwordx2 v[{72+2*s}:{73+2*s}], v5, s[20:23], s40 offen offset:{1024*s+512}{PTS}")
e("  v_lshrrev_b32 v7, 3, v0")
e("  v_and_b32 v8, 7, v0")
e("  v_lshlrev_b32 v8, 4, v8")
e("  v_lshl_add_u32 v9, v7, 10, v8")
for i in range(8):
    e(f"  buffer_load_dwordx4 v[{32+4*i}:{35+4*i}], v9, s[16:19], s38 offen{WTS}")
    if i < 7:
        e("  s_add_u32 s38, s38, 0x8000")
e("  s_waitcnt vmcnt(8)")
e("  v_max3_f32 v10, v72, v74, v76")
e("  v_max_f32 v10, v10, v78")
for s in range(4):
    e(f"  v_sub_f32 v{72+2*s}, v{72+2*s}, v10")
    e(f"  v_mul_f32 v{72+2*s}, s45, v{72+2*s}")
    e(f"  v_exp_f32 v{72+2*s}, v{72+2*s}")
e("  s_nop 0")
e("  v_mul_f32 v11, v72, v73\n  v_mul_f32 v12, v72, v64\n  v_mul_f32 v13, v72, v65")
for s in range(1, 4):
    e(f"  v_fmac_f32 v11, v{72+2*s}, v{73+2*s}")
    e(f"  v_fmac_f32 v12, v{72+2*s}, v{64+2*s}")
    e(f"  v_fmac_f32 v13, v{72+2*s}, v{65+2*s}")
e("  v_rcp_f32 v14, v11")
e("  s_nop 0")
for r in (12, 13):
    e(f"  v_mul_f32 v15, v{r}, v14")
    e(f"  v_fma_f32 v16, -v15, v11, v{r}")
    e("  v_fma_f32 v15, v16, v14, v15")
    bf16r(r, 15)
e("  v_lshlrev_b32 v15, 10, v4")
e("  v_lshl_add_u32 v15, v1, 4, v15")
e("  v_lshl_add_u32 v15, v3, 2, v15")
e(f"  ds_write_b32 v15, v12 offset:{O_OFF}")
e(f"  ds_write_b32 v15, v13 offset:{O_OFF+8}")
e("  v_lshlrev_b32 v16, 3, v7")
for j in range(16):
    e(f"  v_mov_b32 v{96+j}, 0")
e("  s_waitcnt lgkmcnt(0)")
e("  s_barrier")
for i in range(8):
    e(f"  ds_read_b64 v[{64+2*i}:{65+2*i}], v16 offset:{O_OFF+256*i}")
e("  s_waitcnt vmcnt(0) lgkmcnt(0)")
for i in range(8):
    for j in range(4):
        e(f"  v_lshlrev_b32 v18, 16, v{32+4*i+j}")
        e(f"  v_and_b32 v19, 0xffff0000, v{32+4*i+j}")
        e(f"  v_fmac_f32 v{96+2*j}, v18, v{64+2*i}")
        e(f"  v_fmac_f32 v{97+2*j}, v19, v{64+2*i}")
        e(f"  v_fmac_f32 v{104+2*j}, v18, v{65+2*i}")
        e(f"  v_fmac_f32 v{105+2*j}, v19, v{65+2*i}")
e("  s_nop 1")
for j in range(16):
    e(f"  v_add_f32_dpp v{96+j}, v{96+j}, v{96+j} row_ror:8 row_mask:0xf bank_mask:0xf")
e("  v_lshrrev_b32 v17, 4, v0")
e("  v_lshlrev_b32 v17, 9, v17")
e("  v_and_b32 v18, 7, v0")
e("  v_lshl_add_u32 v17, v18, 5, v17")
e(f"  ds_write_b128 v17, v[96:99] offset:{RED}")
e(f"  ds_write_b128 v17, v[100:103] offset:{RED+16}")
e(f"  ds_write_b128 v17, v[104:107] offset:{RED+256}")
e(f"  ds_write_b128 v17, v[108:111] offset:{RED+256+16}")
e("  v_lshlrev_b32 v18, 2, v0")
e("  s_waitcnt lgkmcnt(0)")
e("  s_barrier")
e("  v_cmp_gt_u32 vcc, 128, v0")
e("  s_and_saveexec_b64 s[42:43], vcc")
e("  s_cbranch_execz B_w1")
for p in range(16):
    e(f"  ds_read_b32 v{32+p}, v18 offset:{RED+512*p}")
e("  v_lshlrev_b32 v19, 11, v2")
e("  v_lshl_add_u32 v19, v1, 2, v19")
e("  s_lshl_b32 s39, s37, 8")
e(f"  s_add_u32 s39, s39, {ACC_OFF}")
e("  s_waitcnt lgkmcnt(0)")
for p in range(1, 16):
    e(f"  v_add_f32 v32, v32, v{32+p}")
e("  buffer_atomic_add_f32 v32, v19, s[20:23], s39 offen sc0")
e("  s_waitcnt vmcnt(0)")
e("B_w1:")
e("  s_mov_b64 exec, s[42:43]")
e("  s_branch B_arrive")
e("B_ffn:")
RED2 = 16384
srd(28, 12, 1409024)
e("  s_sub_u32 s36, s2, 128")
e("  s_lshl_b32 s39, s36, 15")
H_OFF = 0
e("  s_lshl_b32 s38, s36, 7")
e(f"  s_add_u32 s38, s38, {GU_WS}")
e("  v_lshrrev_b32 v3, 5, v1")
e("  v_and_b32 v4, 31, v1")
e("  s_movk_i32 s40, 5632")
e("  v_mul_lo_u32 v5, v3, s40")
e("  v_lshl_add_u32 v5, v4, 2, v5")
e("  v_add_u32 v8, 11264, v5")
e("  v_readfirstlane_b32 s41, v2")
e("  s_cmp_lg_u32 s41, 0")
e("  s_cbranch_scc1 B_d0")
for rg in range(8):
    e(f"  buffer_load_dword v{32+rg}, v5, s[20:23], s38 offen{PTS}")
    e(f"  buffer_load_dword v{40+rg}, v8, s[20:23], s38 offen{PTS}")
    if rg < 7:
        e(f"  s_add_u32 s38, s38, {4*5632}")
e("B_d0:")
e("  v_lshlrev_b32 v7, 13, v2")
e("  v_lshl_add_u32 v7, v1, 4, v7")
e("  v_add_u32 v6, 4096, v7")
for i in range(8):
    e(f"  buffer_load_dwordx4 v[{96+4*i}:{99+4*i}], v{7 if i < 4 else 6}, s[28:31], s39 offen offset:{1024*(i%4)}{WTS}")
e("  s_cmp_lg_u32 s41, 0")
e("  s_cbranch_scc1 B_d1")
e("  s_waitcnt vmcnt(8)")
for rg in range(1, 8):
    e(f"  v_add_f32 v32, v32, v{32+rg}")
    e(f"  v_add_f32 v40, v40, v{40+rg}")
bf16r(32, 32)
bf16r(40, 40)
gelu_mul(32, 40, 34)
e("  v_lshlrev_b32 v4, 3, v4")
e("  v_lshl_add_u32 v4, v3, 2, v4")
e(f"  ds_write_b32 v4, v34 offset:{H_OFF}")
e("  s_waitcnt lgkmcnt(0)")
e("B_d1:")
for j in range(16):
    e(f"  v_mov_b32 v{128+j}, 0")
e("  v_lshlrev_b32 v30, 2, v0")
e("  v_lshlrev_b32 v27, 6, v2")
e("  s_barrier")
for i in range(8):
    e(f"  ds_read_b64 v[{8+2*i}:{9+2*i}], v27 offset:{H_OFF+8*i}")
e("  s_waitcnt lgkmcnt(0)")
for i in range(8):
    e(f"  s_waitcnt vmcnt({7-i})")
    for j in range(4):
        e(f"  v_lshlrev_b32 v28, 16, v{96+4*i+j}")
        e(f"  v_and_b32 v29, 0xffff0000, v{96+4*i+j}")
        e(f"  v_fmac_f32 v{128+2*j}, v28, v{8+2*i}")
        e(f"  v_fmac_f32 v{129+2*j}, v29, v{8+2*i}")
        e(f"  v_fmac_f32 v{136+2*j}, v28, v{9+2*i}")
        e(f"  v_fmac_f32 v{137+2*j}, v29, v{9+2*i}")
e("  v_lshlrev_b32 v28, 12, v2")
e("  v_lshl_add_u32 v28, v1, 5, v28")
e(f"  ds_write_b128 v28, v[128:131] offset:{RED2}")
e(f"  ds_write_b128 v28, v[132:135] offset:{RED2+16}")
e(f"  ds_write_b128 v28, v[136:139] offset:{RED2+2048}")
e(f"  ds_write_b128 v28, v[140:143] offset:{RED2+2048+16}")
e("  s_waitcnt lgkmcnt(0)")
e("  s_barrier")
for k in range(4):
    for w in range(4):
        e(f"  ds_read_b32 v{32+4*k+w}, v30 offset:{RED2+4096*w+1024*k}")
e(f"  s_mov_b32 s39, {ACC_OFF+4096}")
e("  s_waitcnt lgkmcnt(0)")
for k in range(4):
    e(f"  v_add_f32 v{32+4*k}, v{32+4*k}, v{33+4*k}")
    e(f"  v_add_f32 v{34+4*k}, v{34+4*k}, v{35+4*k}")
    e(f"  v_add_f32 v{32+4*k}, v{32+4*k}, v{34+4*k}")
    e(f"  buffer_atomic_add_f32 v{32+4*k}, v30, s[20:23], s39 offen offset:{1024*k} sc0")
e("  s_waitcnt vmcnt(0)")
e("B_arrive:")
FLAG = 36864
e("  s_barrier")
e("  v_cmp_eq_u32 vcc, 0, v0")
e("  s_and_saveexec_b64 s[42:43], vcc")
e("  s_cbranch_execz B_a1")
e("  s_waitcnt lgkmcnt(0)")
srd(24, 50, 256)
e("  v_mov_b32 v3, 0")
e("  v_mov_b32 v4, 1")
e("  buffer_atomic_add v4, v3, s[24:27], 0 offen sc0")
e("  s_waitcnt vmcnt(0)")
e(f"  ds_write_b32 v3, v4 offset:{FLAG}")
e("  s_waitcnt lgkmcnt(0)")
e("B_a1:")
e("  s_mov_b64 exec, s[42:43]")
e("  v_mov_b32 v3, 0")
e("  s_barrier")
e(f"  ds_read_b32 v4, v3 offset:{FLAG}")
e("  s_waitcnt lgkmcnt(0)")
e("  v_readfirstlane_b32 s44, v4")
e("  s_cmp_lg_u32 s44, 170")
e("  s_cbranch_scc1 B_end")
srd(12, 4, 2048)
srd(16, 48, 2048)
e("  v_lshlrev_b32 v30, 2, v0")
e("  v_lshlrev_b32 v31, 1, v0")
e(f"  s_mov_b32 s38, {ACC_OFF}")
e(f"  s_mov_b32 s39, {ACC_OFF+4096}")
for k in range(4):
    e(f"  v_mov_b32 v{32+k}, 0")
    e(f"  v_mov_b32 v{36+k}, 0")
for k in range(4):
    e(f"  buffer_atomic_add_f32 v{32+k}, v30, s[20:23], s38 offen offset:{1024*k} sc0")
    e(f"  buffer_atomic_add_f32 v{36+k}, v30, s[20:23], s39 offen offset:{1024*k} sc0")
    e(f"  buffer_load_ushort v{40+k}, v31, s[12:15], 0 offen offset:{512*k}")
e("  s_waitcnt vmcnt(0)")
for k in range(4):
    s_, y_, x_, t_ = 32+k, 36+k, 40+k, 44
    bf16r(s_, s_)
    bf16r(y_, y_)
    e(f"  v_mul_f32 v{t_}, {f32(-1.4426950408889634)}, v{y_}")
    e(f"  v_exp_f32 v{t_}, v{t_}")
    e("  s_nop 0")
    e(f"  v_add_f32 v{t_}, 1.0, v{t_}")
    e(f"  v_rcp_f32 v{t_}, v{t_}")
    e("  s_nop 0")
    e(f"  v_mul_f32 v{t_}, v{t_}, v{y_}")
    bf16r(t_, t_)
    e(f"  v_mul_f32 v{t_}, v{t_}, v{s_}")
    bf16r(t_, t_)
    e(f"  v_lshlrev_b32 v{x_}, 16, v{x_}")
    e(f"  v_add_f32 v{t_}, v{t_}, v{x_}")
    e(f"  v_cvt_pk_bf16_f32 v{x_}, v{t_}, v{t_}")
    e(f"  buffer_store_short v{x_}, v31, s[16:19], 0 offen offset:{512*k}")
e("B_end:")
e("  s_endpgm")

e('.section .rodata,"a"')
for (k, nv, ns) in (("attn_kernel", 128, 100), ("proj_kernel", 168, 64)):
    e(".p2align 6")
    e(f".amdhsa_kernel {k}")
    e(f"  .amdhsa_next_free_vgpr {nv}")
    e(f"  .amdhsa_next_free_sgpr {ns}")
    e(f"  .amdhsa_accum_offset {nv}")
    e("  .amdhsa_group_segment_fixed_size 0")
    e("  .amdhsa_kernarg_size 96")
    e("  .amdhsa_user_sgpr_count 2")
    e("  .amdhsa_user_sgpr_kernarg_segment_ptr 1")
    e("  .amdhsa_system_sgpr_workgroup_id_x 1")
    e(".end_amdhsa_kernel")

dst = sys.argv[1] if len(sys.argv) > 1 else f"cdna_kernels/{NAME}.s"
open(dst, "w").write("\n".join(out) + "\n")
```

```python
import sys, struct

NAME = "recurrent_scan__mha_block_cached__geglu_ffn__decode"
out = []
def e(s=""):
    out.append(s)
def f32(x):
    return "0x%08x" % struct.unpack("<I", struct.pack("<f", x))[0]

LOG2E = f32(1.4426950408889634)
SCALE = f32(128 ** -0.5)

import os
NT = os.environ.get("NT", "nt")
NTS = (" " + NT) if NT else ""
VNT = os.environ.get("VNT", NT)
VTS = (" " + VNT) if VNT else ""
WNT = os.environ.get("WNT", "nt")
WTS = (" " + WNT) if WNT else ""
PNT = os.environ.get("PNT", "")
PTS = (" " + PNT) if PNT else ""
SNT = os.environ.get("SNT", "")
STS = (" " + SNT) if SNT else ""

PART_STRIDE = 1024
ACC_OFF = 256 * 1024
WS_SIZE = 0x40000000
GU_WS = ACC_OFF + 8192

def srd(d, p, size):
    e(f"  s_mov_b32 s{d}, s{p}")
    e(f"  s_and_b32 s{d+1}, s{p+1}, 0xffff")
    e(f"  s_mov_b32 s{d+2}, {size}")
    e(f"  s_mov_b32 s{d+3}, 0x00020000")

def row_allreduce(op, v):
    for sh in (8, 4, 2, 1):
        e("  s_nop 1")
        e(f"  {op}_dpp v{v}, v{v}, v{v} row_ror:{sh} row_mask:0xf bank_mask:0xf")

def wave_from_rows(op, v, s0):
    e("  s_nop 1")
    for k in range(4):
        e(f"  v_readlane_b32 s{s0+k}, v{v}, {16*k}")
    e("  s_nop 1")
    e(f"  v_mov_b32 v{v}, s{s0}")
    for k in range(1, 4):
        e(f"  {op} v{v}, s{s0+k}, v{v}")

def bf16r(dst, src):
    e(f"  v_cvt_pk_bf16_f32 v{dst}, v{src}, v{src}")
    e(f"  v_lshlrev_b32 v{dst}, 16, v{dst}")

def layernorm(xr, xf, t, s0):
    for j in range(4):
        e(f"  v_lshlrev_b32 v{xf+2*j}, 16, v{xr+j}")
        e(f"  v_and_b32 v{xf+2*j+1}, 0xffff0000, v{xr+j}")
    e(f"  v_add_f32 v{t}, v{xf}, v{xf+1}")
    for j in range(2, 8):
        e(f"  v_add_f32 v{t}, v{t}, v{xf+j}")
    row_allreduce("v_add_f32", t)
    wave_from_rows("v_add_f32", t, s0)
    e(f"  v_mul_f32 v{t}, {f32(1.0/512)}, v{t}")
    e(f"  v_sub_f32 v{t+2}, v{xf}, v{t}")
    e(f"  v_mul_f32 v{t+1}, v{t+2}, v{t+2}")
    for j in range(1, 8):
        e(f"  v_sub_f32 v{t+2}, v{xf+j}, v{t}")
        e(f"  v_fmac_f32 v{t+1}, v{t+2}, v{t+2}")
    row_allreduce("v_add_f32", t+1)
    wave_from_rows("v_add_f32", t+1, s0)
    e(f"  v_mul_f32 v{t+1}, {f32(1.0/512)}, v{t+1}")
    bf16r(t, t)
    bf16r(t+1, t+1)
    e(f"  v_add_f32 v{t+1}, {f32(1e-5)}, v{t+1}")
    bf16r(t+1, t+1)
    e(f"  v_sqrt_f32 v{t+1}, v{t+1}")
    e("  s_nop 0")
    bf16r(t+1, t+1)
    e(f"  v_rcp_f32 v{t+2}, v{t+1}")
    e("  s_nop 0")
    for j in range(8):
        e(f"  v_sub_f32 v{t+3}, v{xf+j}, v{t}")
        bf16r(t+3, t+3)
        e(f"  v_mul_f32 v{t+4}, v{t+3}, v{t+2}")
        e(f"  v_fma_f32 v{t+5}, -v{t+4}, v{t+1}, v{t+3}")
        e(f"  v_fma_f32 v{t+4}, v{t+5}, v{t+2}, v{t+4}")
        bf16r(xf+j, t+4)

def gelu_mul(g, u, d):
    e(f"  v_mul_f32 v{d}, v{g}, v{g}")
    e(f"  v_mul_f32 v{d}, v{d}, v{g}")
    e(f"  v_mul_f32 v{d}, {f32(0.044715)}, v{d}")
    e(f"  v_add_f32 v{d}, v{d}, v{g}")
    e(f"  v_mul_f32 v{d}, {f32(2*0.7978845608028654*1.4426950408889634)}, v{d}")
    e(f"  v_exp_f32 v{d}, v{d}")
    e("  s_nop 0")
    e(f"  v_add_f32 v{d}, 1.0, v{d}")
    e(f"  v_rcp_f32 v{d}, v{d}")
    e("  s_nop 0")
    e(f"  v_sub_f32 v{d}, 1.0, v{d}")
    e(f"  v_mul_f32 v{d}, v{d}, v{g}")
    bf16r(d, d)
    e(f"  v_mul_f32 v{d}, v{d}, v{u}")
    bf16r(d, d)

NWG_A = 256
e(f"; @launch kernel=attn_kernel grid=({NWG_A},1,1) block=(1024,1,1) lds=77824")
e("; @launch kernel=proj_kernel grid=(171,1,1) block=(256,1,1) lds=40960")
e('.amdgcn_target "amdgcn-amd-amdhsa--gfx950"')
e(".text")

QRED = 0
Q2 = 32768
ML = 36864
XN = 37888
FRED = 43008

K0, V0, WQ0 = 32, 64, 96
Q, ACC, M, L, S = 4, 8, 16, 17, 18
PLO, PHI, T = 96, 104, 112
VO0, VO1 = 2, 3
NBLK = 8

e(".globl attn_kernel\n.p2align 8\n.type attn_kernel,@function\nattn_kernel:")
e(f"  s_cmp_ge_u32 s2, {NWG_A}")
e("  s_cbranch_scc1 A_end")
e("  s_load_dwordx8 s[4:11], s[0:1], 0")
e("  s_load_dwordx2 s[12:13], s[0:1], 88")
e("  s_load_dwordx4 s[52:55], s[0:1], 48")
e("  s_load_dwordx2 s[70:71], s[0:1], 32")
e("  s_load_dwordx2 s[72:73], s[0:1], 64")
e("  v_and_b32 v1, 63, v0")
e("  v_lshrrev_b32 v26, 6, v0")
XMAP = int(os.environ.get("XMAP", "1"))
if XMAP:
    e("  s_and_b32 s74, s2, 7")
    e("  s_lshr_b32 s75, s2, 3")
    e("  s_and_b32 s37, s75, 3")
    e("  s_lshl_b32 s37, s37, 3")
    e("  s_add_u32 s74, s74, s37")
    e("  s_lshr_b32 s75, s75, 2")
    e("  s_lshr_b32 s37, s75, 2")
    e("  s_lshl_b32 s37, s37, 5")
    e("  s_add_u32 s37, s37, s74")
    e("  s_and_b32 s75, s75, 3")
    e("  s_lshl_b32 s74, s37, 2")
    e("  s_add_u32 s74, s74, s75")
else:
    e("  s_mov_b32 s74, s2")
e("  s_lshr_b32 s37, s74, 2")
e("  s_lshr_b32 s38, s37, 5")
e("  s_and_b32 s39, s37, 31")
if int(os.environ.get("ILV", "1")) == 2:
    e("  s_lshl_b32 s36, s37, 22")
    e("  s_and_b32 s40, s2, 3")
    e("  s_lshl_b32 s40, s40, 17")
    e("  s_add_u32 s36, s36, s40")
else:
    e("  s_lshl_b32 s36, s74, 20")
e("  s_lshl_b32 s40, s38, 10")
e("  s_lshl_b32 s41, s39, 8")
e("  v_lshlrev_b32 v27, 4, v1")
ILV = int(os.environ.get("ILV", "1"))
STEP = {0: 8192, 1: 131072, 2: 524288}[ILV]
e(f"  v_lshl_add_u32 v{VO0}, v26, {13 if ILV else 16}, v27")
e(f"  v_add_u32 v{VO1}, 4096, v{VO0}")
e("  v_lshrrev_b32 v28, 4, v0")
e("  v_and_b32 v29, 15, v0")
e("  v_lshlrev_b32 v29, 4, v29")
e("  v_lshl_add_u32 v28, v28, 13, v29")
e("  s_waitcnt lgkmcnt(0)")
srd(16, 6, 0x10000000)
srd(20, 8, 0x10000000)
srd(24, 10, 0x400000)
srd(28, 4, 2048)
srd(32, 12, WS_SIZE)
e("  s_cmp_lt_u32 s2, 176")
e("  s_cselect_b32 s51, %d, 0" % (0 if os.environ.get("NOFFN") else 1409024))
e("  s_mov_b32 s56, s52\n  s_and_b32 s57, s53, 0xffff\n  s_mov_b32 s58, s51\n  s_mov_b32 s59, 0x00020000")
e("  s_mov_b32 s60, s54\n  s_and_b32 s61, s55, 0xffff\n  s_mov_b32 s62, s51\n  s_mov_b32 s63, 0x00020000")
e("  s_and_b32 s65, s2, 7")
e("  s_lshr_b32 s66, s2, 3")
e(f"  s_mul_i32 s49, s65, {64*2752}")
e("  s_lshl_b32 s50, s66, 7")
e("  s_add_u32 s49, s49, s50")
e("  v_and_b32 v29, 511, v0")
e("  v_lshrrev_b32 v29, 3, v29")
e("  s_movk_i32 s48, 2752")
e("  v_mul_lo_u32 v29, v29, s48")
e("  v_and_b32 v30, 7, v0")
e("  v_lshl_add_u32 v29, v30, 4, v29")
e("  v_readfirstlane_b32 s64, v26")

def kv_loads(base, rsrc, lo=0, hi=8):
    for i in range(lo, hi):
        vo = VO0 if i < 4 else VO1
        e(f"  buffer_load_dwordx4 v[{base+4*i}:{base+4*i+3}], v{vo}, s[{rsrc}:{rsrc+3}], s36 offen offset:{1024*(i%4)}{NTS}")

e(f"  buffer_load_dwordx4 v[16:19], v27, s[28:31], 0 offen{PTS}")
e(f"  buffer_load_dwordx4 v[4:7], v27, s[28:31], 0 offen offset:1024{PTS}")
for i in range(8):
    e(f"  buffer_load_dwordx4 v[{WQ0+4*i}:{WQ0+4*i+3}], v28, s[24:27], s41 offen{WTS}")
    if i < 7:
        e("  s_add_u32 s41, s41, 0x80000")
e("  s_cmp_ge_u32 s64, 8")
e("  s_cbranch_scc1 A_ldu")
e(f"  buffer_load_dwordx4 v[92:95], v29, s[56:59], s49 offen{WTS}")
e("  s_branch A_ldd")
e("A_ldu:")
e(f"  buffer_load_dwordx4 v[92:95], v29, s[60:63], s49 offen{WTS}")
e("A_ldd:")
ROT = int(os.environ.get("ROT", "0"))
if ROT:
    e("  s_mov_b32 s68, s36")
    e(f"  s_lshr_b32 s67, s2, {ROT-1}")
    e("  s_and_b32 s67, s67, 7")
    e("  s_lshl_b32 s36, s67, 17")
    e("  s_add_u32 s36, s36, s68")
    kv_loads(K0, 16)
    e("  s_add_u32 s36, s67, 1")
    e("  s_and_b32 s36, s36, 7")
    e("  s_lshl_b32 s36, s36, 17")
    e("  s_add_u32 s36, s36, s68")
    kv_loads(V0, 16, 0, 7)
else:
    G1 = int(os.environ.get("G", "8")) == 1
    kv_loads(K0, 16)
    if not G1:
        e(f"  s_add_u32 s36, s36, {STEP}")
    kv_loads(V0, 20 if G1 else 16, 0, 7)
e("  s_cmp_lg_u32 s2, 0")
e("  s_cbranch_scc1 A_nozero")
e("  v_cmp_gt_u32 vcc, 512, v0")
e("  s_and_saveexec_b64 s[42:43], vcc")
e("  s_cbranch_execz A_zrest")
e("  v_mov_b32 v20, 0\n  v_mov_b32 v21, 0\n  v_mov_b32 v22, 0\n  v_mov_b32 v23, 0")
e("  v_lshlrev_b32 v24, 4, v0")
e(f"  v_add_u32 v24, {ACC_OFF}, v24")
e(f"  buffer_store_dwordx4 v[20:23], v24, s[32:35], 0 offen{STS}")
e("A_zrest:")
e("  s_mov_b64 exec, s[42:43]")
e("  s_nop 1")
e("A_nozero:")
e("  s_waitcnt vmcnt(24)")
layernorm(16, 8, 20, 44)
e("  v_lshlrev_b32 v30, 5, v1")
e(f"  ds_write_b128 v30, v[8:11] offset:{XN}")
e(f"  ds_write_b128 v30, v[12:15] offset:{XN+16}")
layernorm(4, 8, 20, 44)
e(f"  ds_write_b128 v30, v[8:11] offset:{XN+2048}")
e(f"  ds_write_b128 v30, v[12:15] offset:{XN+2048+16}")
e("  v_lshrrev_b32 v31, 4, v0")
e("  v_lshlrev_b32 v31, 2, v31")
e("  s_lshl_b32 s40, s38, 11")
e("  v_add_u32 v31, s40, v31")
e("  v_and_b32 v30, 511, v0")
e("  v_lshrrev_b32 v30, 3, v30")
e("  s_lshl_b32 s40, s65, 8")
e("  v_lshl_add_u32 v30, v30, 2, s40")
e("  s_waitcnt lgkmcnt(0)")
for i in range(8):
    e(f"  ds_read_b32 v{16+i}, v31 offset:{XN+256*i}")
e(f"  ds_read_b32 v27, v30 offset:{XN}")
e(f"  ds_read_b32 v28, v30 offset:{XN+2048}")
for j in range(8):
    e(f"  v_mov_b32 v{8+j}, 0")
e("  s_waitcnt vmcnt(16) lgkmcnt(0)")
for i in range(8):
    for j in range(4):
        e(f"  v_lshlrev_b32 v24, 16, v{WQ0+4*i+j}")
        e(f"  v_and_b32 v25, 0xffff0000, v{WQ0+4*i+j}")
        e(f"  v_fmac_f32 v{8+2*j}, v24, v{16+i}")
        e(f"  v_fmac_f32 v{8+2*j+1}, v25, v{16+i}")
e("  v_lshlrev_b32 v30, 5, v0")
e(f"  ds_write_b128 v30, v[8:11] offset:{QRED}")
e(f"  ds_write_b128 v30, v[12:15] offset:{QRED+16}")
e("  s_waitcnt vmcnt(15)")
for j in range(4):
    e(f"  v_lshlrev_b32 v{112+2*j}, 16, v{92+j}")
    e(f"  v_and_b32 v{113+2*j}, 0xffff0000, v{92+j}")
for j in range(8):
    e(f"  v_mul_f32 v{96+j}, v{112+j}, v27")
    e(f"  v_mul_f32 v{104+j}, v{112+j}, v28")
kv_loads(V0, 20 if G1 else 16, 7, 8)
if not G1:
    e(f"  s_sub_u32 s36, s36, {STEP}")
for j in range(16):
    e(f"  v_add_f32_dpp v{96+j}, v{96+j}, v{96+j} row_ror:8 row_mask:0xf bank_mask:0xf")
e("  v_lshrrev_b32 v24, 4, v0")
e("  v_lshlrev_b32 v24, 9, v24")
e("  v_and_b32 v25, 7, v0")
e("  v_lshl_add_u32 v24, v25, 5, v24")
e(f"  ds_write_b128 v24, v[96:99] offset:{FRED}")
e(f"  ds_write_b128 v24, v[100:103] offset:{FRED+16}")
e(f"  ds_write_b128 v24, v[104:107] offset:{FRED+256}")
e(f"  ds_write_b128 v24, v[108:111] offset:{FRED+256+16}")
e("  v_and_b32 v24, 127, v0")
e("  v_lshrrev_b32 v25, 7, v0")
e("  v_lshlrev_b32 v24, 2, v24")
e("  v_lshl_add_u32 v31, v25, 12, v24")
e("  s_waitcnt lgkmcnt(0)")
e("  s_barrier")
for r in range(8):
    e(f"  ds_read_b32 v{16+r}, v31 offset:{QRED+512*r}")
e("  v_lshlrev_b32 v29, 2, v0")
e("  s_waitcnt lgkmcnt(0)")
for r in range(1, 8):
    e(f"  v_add_f32 v16, v16, v{16+r}")
e(f"  ds_write_b32 v29, v16 offset:{Q2}")
e("  s_cmp_ge_u32 s64, 4")
e("  s_cbranch_scc1 A_nf1")
e("  s_cmp_ge_u32 s2, 176")
e("  s_cbranch_scc1 A_nf1")
e("  v_lshrrev_b32 v24, 7, v0")
e("  v_and_b32 v25, 127, v0")
e("  v_lshlrev_b32 v24, 14, v24")
e("  v_lshl_add_u32 v24, v25, 2, v24")
for p in range(32):
    e(f"  ds_read_b32 v{96+p}, v24 offset:{FRED+512*p}")
e("  s_lshl_b32 s48, s65, 2")
e("  s_add_u32 s48, s48, s64")
e("  s_mul_i32 s48, s48, 5632")
e("  s_lshl_b32 s49, s66, 8")
e("  s_add_u32 s48, s48, s49")
e(f"  s_add_u32 s48, s48, {GU_WS}")
e("  v_lshlrev_b32 v25, 2, v1")
e("  s_waitcnt lgkmcnt(0)")
for p in range(1, 32):
    e(f"  v_add_f32 v96, v96, v{96+p}")
e(f"  buffer_store_dword v96, v25, s[32:35], s48 offen{STS}")
e("A_nf1:")
e("  v_and_b32 v24, 15, v1")
e("  v_lshlrev_b32 v24, 5, v24")
e("  s_waitcnt lgkmcnt(0)")
e("  s_barrier")
for jj in range(8):
    e(f"  ds_read_b128 v[{WQ0+8*(jj%4)}:{WQ0+8*(jj%4)+3}], v24 offset:{Q2+512*jj}")
    e(f"  ds_read_b128 v[{WQ0+8*(jj%4)+4}:{WQ0+8*(jj%4)+7}], v24 offset:{Q2+512*jj+16}")
    if jj % 4 == 3:
        e("  s_waitcnt lgkmcnt(0)")
        for k in range(4):
            for j in range(8):
                if jj == 3 and k == 0:
                    e(f"  v_mov_b32 v{8+j}, v{WQ0+j}")
                else:
                    e(f"  v_add_f32 v{8+j}, v{8+j}, v{WQ0+8*k+j}")
for j in range(4):
    e(f"  v_cvt_pk_bf16_f32 v{Q+j}, v{8+2*j}, v{8+2*j+1}")
for j in range(8):
    e(f"  v_mov_b32 v{ACC+j}, 0")
e(f"  v_mov_b32 v{M}, 0xff800000")
e(f"  v_mov_b32 v{L}, 0")
e(f"  s_mov_b32 s44, {SCALE}")
e(f"  s_mov_b32 s45, {LOG2E}")
e("  s_mov_b32 s46, 0")

PURE = int(os.environ.get("PURE", "0"))
def block(last):
    if PURE:
        e("  s_waitcnt vmcnt(8)")
        e(f"  v_add_f32 v{ACC}, v{K0}, v{ACC}")
        if not last:
            kv_loads(K0, 16)
        e("  s_waitcnt vmcnt(0)" if last else "  s_waitcnt vmcnt(8)")
        e(f"  v_add_f32 v{ACC}, v{V0}, v{ACC}")
        if not last:
            kv_loads(V0, 20)
            e(f"  s_add_u32 s36, s36, {STEP}")
        return
    e("  s_waitcnt vmcnt(8)")
    for t in range(4):
        for i in range(8):
            c = "0" if t == 0 else f"v{S+i}"
            e(f"  v_dot2_f32_bf16 v{S+i}, v{K0+4*i+t}, v{Q+t}, {c}")
    if not last:
        kv_loads(K0, 16)
    for sh in (8, 4, 2, 1):
        for i in range(8):
            e(f"  v_add_f32_dpp v{S+i}, v{S+i}, v{S+i} row_ror:{sh} row_mask:0xf bank_mask:0xf")
    for rnd in range(2):
        for p in range(4):
            e(f"  v_cvt_pk_bf16_f32 v{T+p}, v{S+2*p}, v{S+2*p+1}")
        for p in range(4):
            e(f"  v_lshlrev_b32 v{S+2*p}, 16, v{T+p}")
            e(f"  v_and_b32 v{S+2*p+1}, 0xffff0000, v{T+p}")
        if rnd == 0:
            for i in range(8):
                e(f"  v_mul_f32 v{S+i}, s44, v{S+i}")
    MN, A = T+4, T+5
    e(f"  v_max3_f32 v{MN}, v{M}, v{S}, v{S+1}")
    for p in range(1, 4):
        e(f"  v_max3_f32 v{MN}, v{MN}, v{S+2*p}, v{S+2*p+1}")
    e(f"  v_sub_f32 v{A}, v{M}, v{MN}")
    for i in range(8):
        e(f"  v_sub_f32 v{S+i}, v{S+i}, v{MN}")
    e(f"  v_mul_f32 v{A}, s45, v{A}")
    for i in range(8):
        e(f"  v_mul_f32 v{S+i}, s45, v{S+i}")
    e(f"  v_exp_f32 v{A}, v{A}")
    for i in range(8):
        e(f"  v_exp_f32 v{S+i}, v{S+i}")
    e(f"  v_mov_b32 v{M}, v{MN}")
    for j in range(8):
        e(f"  v_mul_f32 v{ACC+j}, v{ACC+j}, v{A}")
    for p in range(4):
        e(f"  v_add_f32 v{T+p}, v{S+2*p}, v{S+2*p+1}")
    e(f"  v_add_f32 v{T}, v{T}, v{T+1}")
    e(f"  v_add_f32 v{T+2}, v{T+2}, v{T+3}")
    e(f"  v_add_f32 v{T}, v{T}, v{T+2}")
    e(f"  v_fma_f32 v{L}, v{L}, v{A}, v{T}")
    for i in range(8):
        e(f"  v_cvt_pk_bf16_f32 v{PLO+i}, v{S+i}, 0")
        e(f"  v_cvt_pk_bf16_f32 v{PHI+i}, 0, v{S+i}")
    e("  s_waitcnt vmcnt(0)" if last else "  s_waitcnt vmcnt(8)")
    for i in range(8):
        for t in range(4):
            e(f"  v_dot2_f32_bf16 v{ACC+2*t}, v{V0+4*i+t}, v{PLO+i}, v{ACC+2*t}")
            e(f"  v_dot2_f32_bf16 v{ACC+2*t+1}, v{V0+4*i+t}, v{PHI+i}, v{ACC+2*t+1}")
    if not last:
        kv_loads(V0, 20)
        e(f"  s_add_u32 s36, s36, {STEP}")

SC = 96
PFN = int(os.environ.get("PFN", "99"))
TT = 26
G = int(os.environ.get("G", "8"))
MG = 30
seq = []
for g in range(8 // G):
    seq += [("K", g*G + j) for j in range(G)] + [("V", g*G + j) for j in range(G)]
assert seq[0] == ("K", 0) and (G == 1 or seq[1] == ("K", 1))
def issue(pos):
    m, blk = seq[pos]
    buf = K0 if pos % 2 == 0 else V0
    r = 16 if m == "K" else 20
    e(f"  s_add_u32 s46, s36, {STEP*blk}")
    for i in range(8):
        vo = VO0 if i < 4 else VO1
        e(f"  buffer_load_dwordx4 v[{buf+4*i}:{buf+4*i+3}], v{vo}, s[{r}:{r+3}], s46 offen offset:{1024*(i%4)}{NTS if m == 'K' else VTS}")
for n in range(16):
    buf = K0 if n % 2 == 0 else V0
    m, blk = seq[n]
    k = blk % G
    e("  s_waitcnt vmcnt(0)" if n == 15 else "  s_waitcnt vmcnt(8)")
    if m == "K":
        if k == 0:
            e(f"  v_mov_b32 v{MG}, v{M}")
        for t in range(4):
            for i in range(8):
                c = "0" if t == 0 else f"v{S+i}"
                e(f"  v_dot2_f32_bf16 v{S+i}, v{buf+4*i+t}, v{Q+t}, {c}")
        if n + 2 < 16:
            issue(n + 2)
        for sh in (8, 4, 2, 1):
            for i in range(8):
                e(f"  v_add_f32_dpp v{S+i}, v{S+i}, v{S+i} row_ror:{sh} row_mask:0xf bank_mask:0xf")
        for p in range(4):
            e(f"  v_cvt_pk_bf16_f32 v{TT+p}, v{S+2*p}, v{S+2*p+1}")
        for p in range(4):
            e(f"  v_lshlrev_b32 v{S+2*p}, 16, v{TT+p}")
            e(f"  v_and_b32 v{S+2*p+1}, 0xffff0000, v{TT+p}")
        for i in range(8):
            e(f"  v_mul_f32 v{S+i}, s44, v{S+i}")
        for p in range(4):
            e(f"  v_cvt_pk_bf16_f32 v{SC+4*k+p}, v{S+2*p}, v{S+2*p+1}")
            e(f"  v_max3_f32 v{MG}, v{MG}, v{S+2*p}, v{S+2*p+1}")
        if k == G - 1:
            bf16r(MG, MG)
            if blk >= G:
                e(f"  v_sub_f32 v{TT}, v{M}, v{MG}")
                e(f"  v_mul_f32 v{TT}, s45, v{TT}")
                e(f"  v_exp_f32 v{TT}, v{TT}")
                e("  s_nop 0")
                for j in range(8):
                    e(f"  v_mul_f32 v{ACC+j}, v{ACC+j}, v{TT}")
                e(f"  v_mul_f32 v{L}, v{L}, v{TT}")
            e(f"  v_mov_b32 v{M}, v{MG}")
    else:
        for p in range(4):
            e(f"  v_lshlrev_b32 v{S+2*p}, 16, v{SC+4*k+p}")
            e(f"  v_and_b32 v{S+2*p+1}, 0xffff0000, v{SC+4*k+p}")
        for i in range(8):
            e(f"  v_sub_f32 v{S+i}, v{S+i}, v{M}")
        for i in range(8):
            e(f"  v_mul_f32 v{S+i}, s45, v{S+i}")
        for i in range(8):
            e(f"  v_exp_f32 v{S+i}, v{S+i}")
        for p in range(4):
            e(f"  v_add_f32 v{TT+p}, v{S+2*p}, v{S+2*p+1}")
        e(f"  v_add_f32 v{TT}, v{TT}, v{TT+1}")
        e(f"  v_add_f32 v{TT+2}, v{TT+2}, v{TT+3}")
        e(f"  v_add_f32 v{TT}, v{TT}, v{TT+2}")
        e(f"  v_add_f32 v{L}, v{L}, v{TT}")
        for i in range(8):
            lo, hi = TT + 2*(i % 2), TT + 2*(i % 2) + 1
            e(f"  v_cvt_pk_bf16_f32 v{lo}, v{S+i}, 0")
            e(f"  v_cvt_pk_bf16_f32 v{hi}, 0, v{S+i}")
            for t in range(4):
                e(f"  v_dot2_f32_bf16 v{ACC+2*t}, v{buf+4*i+t}, v{lo}, v{ACC+2*t}")
                e(f"  v_dot2_f32_bf16 v{ACC+2*t+1}, v{buf+4*i+t}, v{hi}, v{ACC+2*t+1}")
        if n + 2 < 16:
            issue(n + 2)
e("  v_lshrrev_b32 v26, 6, v0")
e("  v_and_b32 v24, 127, v0")
e("  v_lshrrev_b32 v25, 7, v0")
e("  v_lshlrev_b32 v24, 2, v24")
e("  v_lshl_add_u32 v31, v25, 12, v24")
e("A_epi:")
e("  s_nop 3")
e(f"  v_mov_b32 v20, v{M}")
wave_from_rows("v_max_f32", 20, 48)
e(f"  v_sub_f32 v21, v{M}, v20")
e("  v_mul_f32 v21, s45, v21")
e("  v_exp_f32 v21, v21")
e("  s_nop 0")
e(f"  v_mul_f32 v{L}, v{L}, v21")
for j in range(8):
    e(f"  v_mul_f32 v{ACC+j}, v{ACC+j}, v21")
wave_from_rows("v_add_f32", L, 48)
e("  v_lshlrev_b32 v30, 5, v0")
e(f"  ds_write_b128 v30, v[{ACC}:{ACC+3}] offset:{QRED}")
e(f"  ds_write_b128 v30, v[{ACC+4}:{ACC+7}] offset:{QRED+16}")
e("  v_lshlrev_b32 v29, 2, v26")
e(f"  ds_write_b32 v29, v20 offset:{ML}")
e(f"  ds_write_b32 v29, v{L} offset:{ML+64}")
e("  v_mov_b32 v24, 0")
e("  v_lshrrev_b32 v25, 7, v0")
e("  v_lshlrev_b32 v28, 3, v25")
e("  s_waitcnt lgkmcnt(0)")
e("  s_barrier")
for k in range(4):
    e(f"  ds_read_b128 v[{32+4*k}:{35+4*k}], v24 offset:{ML+16*k}")
e(f"  ds_read_b64 v[48:49], v28 offset:{ML}")
for r in range(8):
    e(f"  ds_read_b32 v{50+r}, v31 offset:{QRED+512*r}")
e("  s_waitcnt lgkmcnt(0)")
e("  v_max3_f32 v60, v32, v33, v34")
for k in range(35, 47, 2):
    e(f"  v_max3_f32 v60, v60, v{k}, v{k+1}")
e("  v_max_f32 v60, v60, v47")
e("  v_sub_f32 v48, v48, v60\n  v_sub_f32 v49, v49, v60")
e("  v_mul_f32 v48, s45, v48\n  v_mul_f32 v49, s45, v49")
e("  v_exp_f32 v48, v48\n  v_exp_f32 v49, v49")
e("  v_add_f32 v50, v50, v51\n  v_add_f32 v52, v52, v53\n  v_add_f32 v54, v54, v55\n  v_add_f32 v56, v56, v57")
e("  v_add_f32 v50, v50, v52\n  v_add_f32 v54, v54, v56")
e("  v_mul_f32 v50, v50, v48")
e("  v_fmac_f32 v50, v54, v49")
e("  v_lshlrev_b32 v29, 2, v0")
e(f"  ds_write_b32 v29, v50 offset:{Q2}")
e("  s_waitcnt lgkmcnt(0)")
e("  s_barrier")
e("  v_cmp_gt_u32 vcc, 128, v0")
e("  s_and_saveexec_b64 s[42:43], vcc")
e("  s_cbranch_execz A_end")
for r in range(8):
    e(f"  ds_read_b32 v{50+r}, v29 offset:{Q2+512*r}")
for k in range(4):
    e(f"  ds_read_b128 v[{64+4*k}:{67+4*k}], v24 offset:{ML+64+16*k}")
e("  s_waitcnt lgkmcnt(0)")
for r in range(1, 8):
    e(f"  v_add_f32 v50, v50, v{50+r}")
e("  v_mov_b32 v61, 0")
for k in range(16):
    e(f"  v_sub_f32 v{32+k}, v{32+k}, v60")
    e(f"  v_mul_f32 v{32+k}, s45, v{32+k}")
    e(f"  v_exp_f32 v{32+k}, v{32+k}")
    e("  s_nop 0")
    e(f"  v_fmac_f32 v61, v{32+k}, v{64+k}")
e("  s_lshl_b32 s47, s74, 10")
e(f"  buffer_store_dword v50, v29, s[32:35], s47 offen{STS}")
e("  v_cmp_eq_u32 vcc, 0, v0")
e("  s_and_saveexec_b64 s[42:43], vcc")
e("  s_cbranch_execz A_end")
e(f"  buffer_store_dwordx2 v[60:61], v24, s[32:35], s47 offen offset:512{STS}")
e("A_end:")
e("  s_endpgm")

e(".globl proj_kernel\n.p2align 8\n.type proj_kernel,@function\nproj_kernel:")
e("  s_cmp_ge_u32 s2, 171")
e("  s_cbranch_scc1 B_end")
e("  s_load_dwordx2 s[4:5], s[0:1], 0")
e("  s_load_dwordx2 s[6:7], s[0:1], 32")
e("  s_load_dwordx4 s[8:11], s[0:1], 48")
e("  s_load_dwordx2 s[12:13], s[0:1], 64")
e("  s_load_dwordx2 s[14:15], s[0:1], 88")
e("  s_load_dwordx4 s[48:51], s[0:1], 72")
e("  v_and_b32 v1, 63, v0")
e("  v_lshrrev_b32 v2, 6, v0")
e(f"  s_mov_b32 s45, {LOG2E}")
e("  s_waitcnt lgkmcnt(0)")
srd(20, 14, WS_SIZE)
e("  s_cmp_ge_u32 s2, 128")
e("  s_cbranch_scc1 B_ffn")
O_OFF, RED = 0, 2048
srd(16, 6, 0x400000)
e("  s_lshr_b32 s36, s2, 3")
e("  s_and_b32 s37, s2, 7")
e("  s_lshl_b32 s38, s36, 18")
e("  s_lshl_b32 s39, s37, 7")
e("  s_add_u32 s38, s38, s39")
e("  s_lshl_b32 s40, s36, 13")
e("  v_lshrrev_b32 v3, 1, v2")
e("  v_and_b32 v4, 1, v2")
e("  v_lshlrev_b32 v5, 17, v3")
e("  v_lshl_add_u32 v5, v4, 12, v5")
e("  v_lshl_add_u32 v6, v1, 3, v5")
for s in range(4):
    e(f"  buffer_load_dwordx2 v[{64+2*s}:{65+2*s}], v6, s[20:23], s40 offen offset:{1024*s}{PTS}")
    e(f"  buffer_load_dwordx2 v[{72+2*s}:{73+2*s}], v5, s[20:23], s40 offen offset:{1024*s+512}{PTS}")
e("  v_lshrrev_b32 v7, 3, v0")
e("  v_and_b32 v8, 7, v0")
e("  v_lshlrev_b32 v8, 4, v8")
e("  v_lshl_add_u32 v9, v7, 10, v8")
for i in range(8):
    e(f"  buffer_load_dwordx4 v[{32+4*i}:{35+4*i}], v9, s[16:19], s38 offen{WTS}")
    if i < 7:
        e("  s_add_u32 s38, s38, 0x8000")
e("  s_waitcnt vmcnt(8)")
e("  v_max3_f32 v10, v72, v74, v76")
e("  v_max_f32 v10, v10, v78")
for s in range(4):
    e(f"  v_sub_f32 v{72+2*s}, v{72+2*s}, v10")
    e(f"  v_mul_f32 v{72+2*s}, s45, v{72+2*s}")
    e(f"  v_exp_f32 v{72+2*s}, v{72+2*s}")
e("  s_nop 0")
e("  v_mul_f32 v11, v72, v73\n  v_mul_f32 v12, v72, v64\n  v_mul_f32 v13, v72, v65")
for s in range(1, 4):
    e(f"  v_fmac_f32 v11, v{72+2*s}, v{73+2*s}")
    e(f"  v_fmac_f32 v12, v{72+2*s}, v{64+2*s}")
    e(f"  v_fmac_f32 v13, v{72+2*s}, v{65+2*s}")
e("  v_rcp_f32 v14, v11")
e("  s_nop 0")
for r in (12, 13):
    e(f"  v_mul_f32 v15, v{r}, v14")
    e(f"  v_fma_f32 v16, -v15, v11, v{r}")
    e("  v_fma_f32 v15, v16, v14, v15")
    bf16r(r, 15)
e("  v_lshlrev_b32 v15, 10, v4")
e("  v_lshl_add_u32 v15, v1, 4, v15")
e("  v_lshl_add_u32 v15, v3, 2, v15")
e(f"  ds_write_b32 v15, v12 offset:{O_OFF}")
e(f"  ds_write_b32 v15, v13 offset:{O_OFF+8}")
e("  v_lshlrev_b32 v16, 3, v7")
for j in range(16):
    e(f"  v_mov_b32 v{96+j}, 0")
e("  s_waitcnt lgkmcnt(0)")
e("  s_barrier")
for i in range(8):
    e(f"  ds_read_b64 v[{64+2*i}:{65+2*i}], v16 offset:{O_OFF+256*i}")
e("  s_waitcnt vmcnt(0) lgkmcnt(0)")
for i in range(8):
    for j in range(4):
        e(f"  v_lshlrev_b32 v18, 16, v{32+4*i+j}")
        e(f"  v_and_b32 v19, 0xffff0000, v{32+4*i+j}")
        e(f"  v_fmac_f32 v{96+2*j}, v18, v{64+2*i}")
        e(f"  v_fmac_f32 v{97+2*j}, v19, v{64+2*i}")
        e(f"  v_fmac_f32 v{104+2*j}, v18, v{65+2*i}")
        e(f"  v_fmac_f32 v{105+2*j}, v19, v{65+2*i}")
e("  s_nop 1")
for j in range(16):
    e(f"  v_add_f32_dpp v{96+j}, v{96+j}, v{96+j} row_ror:8 row_mask:0xf bank_mask:0xf")
e("  v_lshrrev_b32 v17, 4, v0")
e("  v_lshlrev_b32 v17, 9, v17")
e("  v_and_b32 v18, 7, v0")
e("  v_lshl_add_u32 v17, v18, 5, v17")
e(f"  ds_write_b128 v17, v[96:99] offset:{RED}")
e(f"  ds_write_b128 v17, v[100:103] offset:{RED+16}")
e(f"  ds_write_b128 v17, v[104:107] offset:{RED+256}")
e(f"  ds_write_b128 v17, v[108:111] offset:{RED+256+16}")
e("  v_lshlrev_b32 v18, 2, v0")
e("  s_waitcnt lgkmcnt(0)")
e("  s_barrier")
e("  v_cmp_gt_u32 vcc, 128, v0")
e("  s_and_saveexec_b64 s[42:43], vcc")
e("  s_cbranch_execz B_w1")
for p in range(16):
    e(f"  ds_read_b32 v{32+p}, v18 offset:{RED+512*p}")
e("  v_lshlrev_b32 v19, 11, v2")
e("  v_lshl_add_u32 v19, v1, 2, v19")
e("  s_lshl_b32 s39, s37, 8")
e(f"  s_add_u32 s39, s39, {ACC_OFF}")
e("  s_waitcnt lgkmcnt(0)")
for p in range(1, 16):
    e(f"  v_add_f32 v32, v32, v{32+p}")
e("  buffer_atomic_add_f32 v32, v19, s[20:23], s39 offen sc0")
e("  s_waitcnt vmcnt(0)")
e("B_w1:")
e("  s_mov_b64 exec, s[42:43]")
e("  s_branch B_arrive")
e("B_ffn:")
RED2 = 16384
srd(28, 12, 1409024)
e("  s_sub_u32 s36, s2, 128")
e("  s_lshl_b32 s39, s36, 15")
H_OFF = 0
e("  s_lshl_b32 s38, s36, 7")
e(f"  s_add_u32 s38, s38, {GU_WS}")
e("  v_lshrrev_b32 v3, 5, v1")
e("  v_and_b32 v4, 31, v1")
e("  s_movk_i32 s40, 5632")
e("  v_mul_lo_u32 v5, v3, s40")
e("  v_lshl_add_u32 v5, v4, 2, v5")
e("  v_add_u32 v8, 11264, v5")
e("  v_readfirstlane_b32 s41, v2")
e("  s_cmp_lg_u32 s41, 0")
e("  s_cbranch_scc1 B_d0")
for rg in range(8):
    e(f"  buffer_load_dword v{32+rg}, v5, s[20:23], s38 offen{PTS}")
    e(f"  buffer_load_dword v{40+rg}, v8, s[20:23], s38 offen{PTS}")
    if rg < 7:
        e(f"  s_add_u32 s38, s38, {4*5632}")
e("B_d0:")
e("  v_lshlrev_b32 v7, 13, v2")
e("  v_lshl_add_u32 v7, v1, 4, v7")
e("  v_add_u32 v6, 4096, v7")
for i in range(8):
    e(f"  buffer_load_dwordx4 v[{96+4*i}:{99+4*i}], v{7 if i < 4 else 6}, s[28:31], s39 offen offset:{1024*(i%4)}{WTS}")
e("  s_cmp_lg_u32 s41, 0")
e("  s_cbranch_scc1 B_d1")
e("  s_waitcnt vmcnt(8)")
for rg in range(1, 8):
    e(f"  v_add_f32 v32, v32, v{32+rg}")
    e(f"  v_add_f32 v40, v40, v{40+rg}")
bf16r(32, 32)
bf16r(40, 40)
gelu_mul(32, 40, 34)
e("  v_lshlrev_b32 v4, 3, v4")
e("  v_lshl_add_u32 v4, v3, 2, v4")
e(f"  ds_write_b32 v4, v34 offset:{H_OFF}")
e("  s_waitcnt lgkmcnt(0)")
e("B_d1:")
for j in range(16):
    e(f"  v_mov_b32 v{128+j}, 0")
e("  v_lshlrev_b32 v30, 2, v0")
e("  v_lshlrev_b32 v27, 6, v2")
e("  s_barrier")
for i in range(8):
    e(f"  ds_read_b64 v[{8+2*i}:{9+2*i}], v27 offset:{H_OFF+8*i}")
e("  s_waitcnt lgkmcnt(0)")
for i in range(8):
    e(f"  s_waitcnt vmcnt({7-i})")
    for j in range(4):
        e(f"  v_lshlrev_b32 v28, 16, v{96+4*i+j}")
        e(f"  v_and_b32 v29, 0xffff0000, v{96+4*i+j}")
        e(f"  v_fmac_f32 v{128+2*j}, v28, v{8+2*i}")
        e(f"  v_fmac_f32 v{129+2*j}, v29, v{8+2*i}")
        e(f"  v_fmac_f32 v{136+2*j}, v28, v{9+2*i}")
        e(f"  v_fmac_f32 v{137+2*j}, v29, v{9+2*i}")
e("  v_lshlrev_b32 v28, 12, v2")
e("  v_lshl_add_u32 v28, v1, 5, v28")
e(f"  ds_write_b128 v28, v[128:131] offset:{RED2}")
e(f"  ds_write_b128 v28, v[132:135] offset:{RED2+16}")
e(f"  ds_write_b128 v28, v[136:139] offset:{RED2+2048}")
e(f"  ds_write_b128 v28, v[140:143] offset:{RED2+2048+16}")
e("  s_waitcnt lgkmcnt(0)")
e("  s_barrier")
for k in range(4):
    for w in range(4):
        e(f"  ds_read_b32 v{32+4*k+w}, v30 offset:{RED2+4096*w+1024*k}")
e(f"  s_mov_b32 s39, {ACC_OFF+4096}")
e("  s_waitcnt lgkmcnt(0)")
for k in range(4):
    e(f"  v_add_f32 v{32+4*k}, v{32+4*k}, v{33+4*k}")
    e(f"  v_add_f32 v{34+4*k}, v{34+4*k}, v{35+4*k}")
    e(f"  v_add_f32 v{32+4*k}, v{32+4*k}, v{34+4*k}")
    e(f"  buffer_atomic_add_f32 v{32+4*k}, v30, s[20:23], s39 offen offset:{1024*k} sc0")
e("  s_waitcnt vmcnt(0)")
e("B_arrive:")
FLAG = 36864
e("  s_barrier")
e("  v_cmp_eq_u32 vcc, 0, v0")
e("  s_and_saveexec_b64 s[42:43], vcc")
e("  s_cbranch_execz B_a1")
e("  s_waitcnt lgkmcnt(0)")
srd(24, 50, 256)
e("  v_mov_b32 v3, 0")
e("  v_mov_b32 v4, 1")
e("  buffer_atomic_add v4, v3, s[24:27], 0 offen sc0")
e("  s_waitcnt vmcnt(0)")
e(f"  ds_write_b32 v3, v4 offset:{FLAG}")
e("  s_waitcnt lgkmcnt(0)")
e("B_a1:")
e("  s_mov_b64 exec, s[42:43]")
e("  v_mov_b32 v3, 0")
e("  s_barrier")
e(f"  ds_read_b32 v4, v3 offset:{FLAG}")
e("  s_waitcnt lgkmcnt(0)")
e("  v_readfirstlane_b32 s44, v4")
e("  s_cmp_lg_u32 s44, 170")
e("  s_cbranch_scc1 B_end")
srd(12, 4, 2048)
srd(16, 48, 2048)
e("  v_lshlrev_b32 v30, 2, v0")
e("  v_lshlrev_b32 v31, 1, v0")
e(f"  s_mov_b32 s38, {ACC_OFF}")
e(f"  s_mov_b32 s39, {ACC_OFF+4096}")
for k in range(4):
    e(f"  v_mov_b32 v{32+k}, 0")
    e(f"  v_mov_b32 v{36+k}, 0")
for k in range(4):
    e(f"  buffer_atomic_add_f32 v{32+k}, v30, s[20:23], s38 offen offset:{1024*k} sc0")
    e(f"  buffer_atomic_add_f32 v{36+k}, v30, s[20:23], s39 offen offset:{1024*k} sc0")
    e(f"  buffer_load_ushort v{40+k}, v31, s[12:15], 0 offen offset:{512*k}")
e("  s_waitcnt vmcnt(0)")
for k in range(4):
    s_, y_, x_, t_ = 32+k, 36+k, 40+k, 44
    bf16r(s_, s_)
    bf16r(y_, y_)
    e(f"  v_mul_f32 v{t_}, {f32(-1.4426950408889634)}, v{y_}")
    e(f"  v_exp_f32 v{t_}, v{t_}")
    e("  s_nop 0")
    e(f"  v_add_f32 v{t_}, 1.0, v{t_}")
    e(f"  v_rcp_f32 v{t_}, v{t_}")
    e("  s_nop 0")
    e(f"  v_mul_f32 v{t_}, v{t_}, v{y_}")
    bf16r(t_, t_)
    e(f"  v_mul_f32 v{t_}, v{t_}, v{s_}")
    bf16r(t_, t_)
    e(f"  v_lshlrev_b32 v{x_}, 16, v{x_}")
    e(f"  v_add_f32 v{t_}, v{t_}, v{x_}")
    e(f"  v_cvt_pk_bf16_f32 v{x_}, v{t_}, v{t_}")
    e(f"  buffer_store_short v{x_}, v31, s[16:19], 0 offen offset:{512*k}")
e("B_end:")
e("  s_endpgm")

e('.section .rodata,"a"')
for (k, nv, ns) in (("attn_kernel", 128, 100), ("proj_kernel", 168, 64)):
    e(".p2align 6")
    e(f".amdhsa_kernel {k}")
    e(f"  .amdhsa_next_free_vgpr {nv}")
    e(f"  .amdhsa_next_free_sgpr {ns}")
    e(f"  .amdhsa_accum_offset {nv}")
    e("  .amdhsa_group_segment_fixed_size 0")
    e("  .amdhsa_kernarg_size 96")
    e("  .amdhsa_user_sgpr_count 2")
    e("  .amdhsa_user_sgpr_kernarg_segment_ptr 1")
    e("  .amdhsa_system_sgpr_workgroup_id_x 1")
    e(".end_amdhsa_kernel")

dst = sys.argv[1] if len(sys.argv) > 1 else f"cdna_kernels/{NAME}.s"
open(dst, "w").write("\n".join(out) + "\n")
```
